```python
import torch

def _softmax(x, axis=-1):
    return torch.softmax(x, dim=axis)

def _gelu(x):
    return torch.nn.functional.gelu(x, approximate='tanh')

def _silu(x):
    return torch.nn.functional.silu(x)

def _sigmoid(x):
    return torch.sigmoid(x)

def _layernorm(x, axis=-1, eps=1e-05):
    m = x.mean(dim=axis, keepdim=True)
    v = x.var(dim=axis, keepdim=True, unbiased=False)
    return (x - m) / torch.sqrt(v + eps)

def _scatter_add(tgt, idx, src, axis=0):
    return tgt.clone().index_add_(axis, idx, src)

def _segment_sum(src, seg, n):
    out = torch.zeros((n,) + src.shape[1:], dtype=src.dtype)
    return out.index_add_(0, seg, src)

def _pad(x, pw):
    flat = tuple((v for pair in reversed(pw) for v in pair))
    return torch.nn.functional.pad(x, flat)
kernel_name = 'adaLN_cond__mha_block_cached__mixer_s_mlp__prompt'

def setup_inputs():

    _w = lambda a: (lambda t: t.to(torch.bfloat16) if t.is_floating_point() else t)(torch.as_tensor(a))

    def _A_setup():
        B, Sq, D = (1, 2048, 512)
        H, Sk, Dh = (32, 2048, 128)
        return {'x': _w((lambda *s: torch.randn(*s, dtype=torch.bfloat16) * 0.1)(B, Sq, D)), 'k_cache': _w((lambda *s: torch.randn(*s, dtype=torch.bfloat16) * 0.8)(B, H, Sk, Dh)), 'v_cache': _w((lambda *s: torch.randn(*s, dtype=torch.bfloat16) * 0.8)(B, H, Sk, Dh)), 'wq': _w((lambda *s: torch.randn(*s, dtype=torch.bfloat16) * 0.8)(D, H * Dh) * D ** (-0.5)), 'wo': _w((lambda *s: torch.randn(*s, dtype=torch.bfloat16) * 0.8)(H * Dh, D) * (H * Dh) ** (-0.5))}
    _A_in = _A_setup()

    def _B_setup():
        B, S, D, F = (1, 2048, 512, 1792)
        return {'x': _w((lambda *s: torch.randn(*s, dtype=torch.bfloat16) * 0.1)(B, S, D)), 'w1': _w((lambda *s: torch.randn(*s, dtype=torch.bfloat16) * 3.2)(D, D) * D ** (-0.5)), 'w2': _w((lambda *s: torch.randn(*s, dtype=torch.bfloat16) * 3.2)(D, D) * D ** (-0.5)), 'w3': _w((lambda *s: torch.randn(*s, dtype=torch.bfloat16) * 3.2)(D, F) * D ** (-0.5)), 'w4': _w((lambda *s: torch.randn(*s, dtype=torch.bfloat16) * 3.2)(F, D) * F ** (-0.5))}
    _B_in = _B_setup()
    return {'A_x': _A_in['x'], 'A_k_cache': _A_in['k_cache'], 'A_v_cache': _A_in['v_cache'], 'A_wq': _A_in['wq'], 'A_wo': _A_in['wo'], 'B_x': _B_in['x'], 'B_w1': _B_in['w1'], 'B_w2': _B_in['w2'], 'B_w3': _B_in['w3'], 'B_w4': _B_in['w4'], 'c': _w((lambda *s: torch.randn(*s, dtype=torch.bfloat16) * 0.2)(1, 512) * 8.0), 'w_mod': _w((lambda *s: torch.randn(*s, dtype=torch.bfloat16) * 0.2)(512, 6 * 512) * 512 ** (-0.5) * 8.0)}

def reference(A_x, A_k_cache, A_v_cache, A_wq, A_wo, B_x, B_w1, B_w2, B_w3, B_w4, c, w_mod):

    def _A_ref(x, k_cache, v_cache, wq, wo):
        B, Sq, D = x.shape
        H, Dh = (32, 128)
        q = (lambda x, *d: x.permute(*d))((x @ wq).reshape(B, Sq, H, Dh), 0, 2, 1, 3)
        scores = torch.einsum('bhqd,bhkd->bhqk', q, k_cache) * Dh ** (-0.5)
        p = _softmax(scores, axis=-1)
        o = torch.einsum('bhqk,bhkd->bhqd', p, v_cache)
        return (lambda x, *d: x.permute(*d))(o, 0, 2, 1, 3).reshape(B, Sq, H * Dh) @ wo

    def _B_ref(x, w1, w2, w3, w4):
        B, S, D = x.shape
        h = _gelu(_layernorm(x, axis=-1) @ w1)
        c = D // 4
        g0 = _pad(h[:, :, 0 * c:1 * c], ((0, 0), (1, 0), (0, 0)))[:, :S, :]
        g1 = _pad(h[:, :, 1 * c:2 * c], ((0, 0), (0, 1), (0, 0)))[:, 1:, :]
        g2 = _pad(h[:, :, 2 * c:3 * c], ((0, 0), (2, 0), (0, 0)))[:, :S, :]
        g3 = _pad(h[:, :, 3 * c:], ((0, 0), (0, 2), (0, 0)))[:, 2:, :]
        hs = torch.concatenate([g0, g1, g2, g3], axis=-1) @ w2
        x1 = x + hs
        h2 = _gelu(_layernorm(x1, axis=-1) @ w3) @ w4
        return x1 + h2
    x = A_x
    mod = (_silu(c) @ w_mod).reshape(c.shape[0], 6, 1, -1)
    sa, ca, ga, sb, cb, gb = (mod[:, 0].clone(), mod[:, 1].clone(), mod[:, 2].clone(), mod[:, 3].clone(), mod[:, 4].clone(), mod[:, 5].clone())
    h = _layernorm(x, axis=-1) * (1 + ca) + sa
    x = x + ga * _A_ref(h, A_k_cache, A_v_cache, A_wq, A_wo)
    h = _layernorm(x, axis=-1) * (1 + cb) + sb
    x = x + gb * _B_ref(h, B_w1, B_w2, B_w3, B_w4)
    return x
```

```python
import re

def v(i, n=1):
    return f"v{i}" if n == 1 else f"v[{i}:{i+n-1}]"
def a(i, n=1):
    return f"a{i}" if n == 1 else f"a[{i}:{i+n-1}]"
def s(i, n=1):
    return f"s{i}" if n == 1 else f"s[{i}:{i+n-1}]"

REG = re.compile(r"\b([vas])(?:(\d+)|\[(\d+):(\d+)\])")

def regs_of(tok):
    out = set()
    for m in REG.finditer(tok):
        k = m.group(1)
        if m.group(2) is not None:
            out.add((k, int(m.group(2))))
        else:
            out.update((k, i) for i in range(int(m.group(3)), int(m.group(4)) + 1))
    if re.search(r"\bvcc\b", tok):
        out.add(("s", "vcc"))
    if re.search(r"\bm0\b", tok):
        out.add(("s", "m0"))
    if re.search(r"\bexec\b", tok):
        out.add(("s", "exec"))
    return out

TRANS = ("v_exp_f32", "v_log_f32", "v_rcp_f32", "v_rsq_f32", "v_sqrt_f32", "v_sin_f32", "v_cos_f32", "v_exp_f16", "v_rcp_f16")

class Ins:
    __slots__ = ("text", "op", "dst", "src", "kind", "passes", "states")
    def __init__(self, text):
        self.text = text
        t = text.split(";")[0].strip()
        parts = t.split(None, 1)
        self.op = parts[0]
        ops = [x.strip() for x in re.split(r",(?![^\[]*\])", parts[1])] if len(parts) > 1 else []
        op = self.op
        self.dst, self.src, self.passes, self.states = set(), set(), 0, 1
        if op.startswith("v_mfma"):
            self.kind = "mfma"
            self.passes = 8 if "32x32" in op else 4
            self.dst = regs_of(ops[0]); self.src = [regs_of(ops[1]), regs_of(ops[2]), regs_of(ops[3].split()[0])]
        elif op.startswith("v_"):
            self.kind = "trans" if op.replace("_e32", "").replace("_e64", "") in TRANS else "valu"
            if op.startswith("v_cmp"):
                self.dst = regs_of(ops[0]); self.src = set().union(*[regs_of(x) for x in ops[1:]])
            elif op.startswith(("v_permlane16_swap", "v_permlane32_swap")):
                self.dst = regs_of(ops[0]) | regs_of(ops[1]); self.src = set(self.dst)
            elif op.startswith(("v_add_co", "v_addc_co", "v_sub_co", "v_subb_co")):
                self.dst = regs_of(ops[0]) | regs_of(ops[1]); self.src = set().union(*[regs_of(x) for x in ops[2:]])
            else:
                self.dst = regs_of(ops[0]); self.src = set().union(*[regs_of(x) for x in ops[1:]]) if len(ops) > 1 else set()
                if op.startswith(("v_fmac", "v_dot2c", "v_writelane")):
                    self.src |= self.dst
                if op.startswith("v_cndmask") and len(ops) == 3:
                    self.src.add(("s", "vcc"))
        elif op.startswith("ds_"):
            self.kind = "ds"
            if op.startswith(("ds_read", "ds_bpermute", "ds_swizzle", "ds_permute")):
                self.dst = regs_of(ops[0]); self.src = set().union(*[regs_of(x) for x in ops[1:]])
            else:
                self.src = set().union(*[regs_of(x) for x in ops])
        elif op.startswith(("buffer_", "global_")):
            self.kind = "vmem"
            allr = [regs_of(x) for x in ops]
            islds = t.rstrip().endswith("lds") or " lds " in t or "load_lds" in op
            if "load" in op and not islds:
                self.dst = allr[0]; self.src = set().union(*allr[1:])
            elif "atomic" in op and "sc0" in t:
                self.dst = allr[0] if op.startswith("global") else allr[0]; self.src = set().union(*allr)
            else:
                self.src = set().union(*allr) if allr else set()
                if islds:
                    self.src.add(("s", "m0"))
        elif op == "s_nop":
            self.kind = "salu"; self.states = int(ops[0], 0) + 1
        elif op.startswith("s_"):
            self.kind = "salu"
            if op.startswith(("s_cmp", "s_waitcnt", "s_barrier", "s_branch", "s_cbranch", "s_endpgm", "s_sleep", "s_setprio", "s_bitcmp")):
                self.src = set().union(*[regs_of(x) for x in ops]) if ops else set()
            else:
                self.dst = regs_of(ops[0]) if ops else set(); self.src = set().union(*[regs_of(x) for x in ops[1:]]) if len(ops) > 1 else set()
        else:
            self.kind = "other"

def check(ins, name=""):
    bad = []
    n = len(ins)
    for i, p in enumerate(ins):
        need_max = 20
        dist = 0
        for j in range(i + 1, min(n, i + need_max + 1)):
            c = ins[j]
            csrc = set().union(*c.src) if c.kind == "mfma" else c.src
            req = 0; why = ""
            if p.kind in ("valu", "trans"):
                vd = {r for r in p.dst if r[0] in "va"}
                sd = {r for r in p.dst if r[0] == "s"}
                if c.kind == "mfma" and vd & csrc: req, why = 2, "valu->mfma"
                if p.kind == "trans" and c.kind == "valu" and vd & csrc: req, why = max(req, 1), "trans->valu"
                if c.op.startswith("v_permlane") and vd & csrc: req, why = max(req, 2), "valu->permlane"
                if "_dpp" in c.op or "row_" in c.text or "quad_perm" in c.text:
                    if vd & csrc: req, why = max(req, 2), "valu->dpp"
                if c.op.startswith(("v_readlane", "v_readfirstlane")) and vd & csrc: req, why = max(req, 1), "valu->readlane"
                if c.kind == "vmem" and sd & csrc: req, why = max(req, 5), "valu sgpr->vmem"
                if c.kind in ("valu", "trans") and sd & csrc: req, why = max(req, 2), "valu sgpr->valu"
                if ("s", "exec") in sd and c.kind == "mfma": req, why = max(req, 4), "exec->mfma"
            if p.kind == "mfma":
                d = p.dst
                big = {4: 8, 8: 12}[p.passes]
                if c.kind == "mfma":
                    if d & (c.src[0] | c.src[1]): req, why = big, "mfma D->A/B"
                    if d & c.src[2] and not (c.src[2] == d and c.passes == p.passes): req, why = max(req, {4: 6, 8: 10}[p.passes]), "mfma D->C overlap"
                    if d & c.dst and c.dst != d and not (d & c.src[2]): req, why = max(req, big), "mfma WAW"
                    if d == c.dst and c.src[2] != d: req, why = max(req, {4: 6, 8: 10}[p.passes]), "mfma WAW same D other C"
                elif c.kind in ("valu", "trans"):
                    if d & (csrc | c.dst): req, why = big, "mfma D->valu"
                    if p.src[2] & c.dst and not (d & c.dst): req, why = max(req, {4: 3, 8: 7}[p.passes]), "mfma C WAR"
                elif c.kind in ("ds", "vmem"):
                    if d & (csrc | c.dst): req, why = big, "mfma D->mem"
            if p.kind == "vmem" and "store" in p.op and ("x4" in p.op or "x3" in p.op):
                data = regs_of(p.text.split(None, 1)[1].split(",")[0]) if p.op.startswith("buffer") else p.src
                if c.kind in ("valu", "trans") and data & c.dst: req, why = 2, "store data WAR"
            if p.kind == "salu" and ("s", "m0") in p.dst and c.kind == "vmem" and ("s", "m0") in csrc: req, why = 1, "m0->dma"
            if req and dist < req:
                bad.append(f"{name}: [{why}] need {req} have {dist}\n    {p.text.strip()}\n    {c.text.strip()}")
            dist += c.states
            if dist >= need_max: break
    return bad

class Asm:
    def __init__(self):
        self.lines = []
    def __call__(self, text):
        for t in text.strip("\n").split("\n"):
            t = t.strip()
            if t:
                m = re.search(r"offset:(\d+)", t)
                if m:
                    lim = 4096 if t.startswith(("buffer_", "global_")) else 65536
                    assert int(m.group(1)) < lim, "offset out of range: " + t
                self.lines.append(("i", t))
    def label(self, l):
        self.lines.append(("l", l))
    def raw(self, t):
        self.lines.append(("r", t))
    def nop(self, n):
        while n > 0:
            k = min(n, 16)
            self(f"s_nop {k-1}")
            n -= k
    def text(self):
        out = []
        for k, t in self.lines:
            out.append(t + ":" if k == "l" else (t if k == "r" else "    " + t))
        return "\n".join(out) + "\n"
    def check(self, name=""):
        ins = []; labels = {}
        for k, t in self.lines:
            if k == "l": labels[t] = len(ins)
            elif k == "i": ins.append(Ins(t))
        bad = check(ins, name)
        for i, x in enumerate(ins):
            if x.op.startswith(("s_cbranch", "s_branch")):
                tgt = x.text.split()[1]
                if tgt in labels:
                    j = labels[tgt]
                    path = ins[max(0, i - 24):i + 1] + ins[j:j + 24]
                    for b in check(path, name + "(branch %s)" % tgt):
                        if b not in bad: bad.append(b)
        return bad

KD = """.p2align 6
.amdhsa_kernel {name}
  .amdhsa_next_free_vgpr {nv}
  .amdhsa_next_free_sgpr {ns}
  .amdhsa_accum_offset {acc}
  .amdhsa_group_segment_fixed_size 0
  .amdhsa_kernarg_size 120
  .amdhsa_user_sgpr_count 2
  .amdhsa_user_sgpr_kernarg_segment_ptr 1
  .amdhsa_system_sgpr_workgroup_id_x 1
  .amdhsa_float_denorm_mode_32 3
.end_amdhsa_kernel
"""

def kernel_text(name, asm):
    return f".globl {name}\n.p2align 8\n.type {name},@function\n{name}:\n" + asm.text()
```

```python
from asmlib import *

HEADER = open("adaLN_cond__mha_block_cached__mixer_s_mlp__prompt.s.ref").read().split("; Override launch geometry")[0] \
    if __import__("os").path.exists("adaLN_cond__mha_block_cached__mixer_s_mlp__prompt.s.ref") else ""

def assemble(kernels, launches=None, check=True):
    by = {k["name"]: k for k in kernels}
    launches = launches or [k["name"] for k in kernels]
    out = HEADER
    for n in launches:
        k = by[n]
        out += f"; @launch kernel={n} grid=({k['grid']},1,1) block=({k['block']},1,1) lds={k['lds']}\n"
    out += '.amdgcn_target "amdgcn-amd-amdhsa--gfx950"\n.text\n'
    for k in kernels:
        if check:
            bad = k["asm"].check(k["name"])
            if bad:
                raise SystemExit("hazards:\n" + "\n".join(bad[:40]))
        out += kernel_text(k["name"], k["asm"])
    out += '.section .rodata,"a"\n'
    for k in kernels:
        out += KD.format(name=k["name"], nv=k["nv"], ns=k["ns"], acc=k["acc"])
    return out
```

```python
from asmlib import *
import math

KA_X, KA_K, KA_V, KA_WQ, KA_WO, KA_BX, KA_W1, KA_W2, KA_W3, KA_W4, KA_C, KA_WMOD, KA_OUT, KA_DBG, KA_WS = [8 * i for i in range(15)]

WS_MOD = 0x0
WS_QSG = 0x4000
WS_CS3 = 0x6000
WS_XN = 0x100000
WS_O = 0x400000
WS_END_O = WS_O + 0x1000000
WS_X2 = 0x1400000
WS_XG = 0x1600000
WS_ST1 = 0x1800000
WS_H1 = 0x1900000
WS_X1 = 0x1C00000
WS_X1R = 0x1E00000
WS_ST2 = 0x2000000
WS_U = 0x2100000

QSCALE = math.log2(math.e) / math.sqrt(128.0)

def f32hex(x):
    import struct
    return "0x%08x" % struct.unpack("<I", struct.pack("<f", x))[0]

def srd(A, d, base, size, off=0):
    if off == 0:
        A(f"s_mov_b32 {s(d)}, {s(base)}")
        A(f"s_and_b32 {s(d+1)}, {s(base+1)}, 0xffff")
    else:
        A(f"s_add_u32 {s(d)}, {s(base)}, {off}")
        A(f"s_addc_u32 {s(d+1)}, {s(base+1)}, 0")
        A(f"s_and_b32 {s(d+1)}, {s(d+1)}, 0xffff")
    A(f"s_mov_b32 {s(d+2)}, {size}")
    A(f"s_mov_b32 {s(d+3)}, 0x20000")

def allreduce16(A, regs, op="v_add_f32"):
    for ctl in ("quad_perm:[1,0,3,2]", "quad_perm:[2,3,0,1]", "row_half_mirror", "row_mirror"):
        if len(regs) < 3:
            A.nop(2)
        for r in regs:
            A(f"{op}_dpp {v(r)}, {v(r)}, {v(r)} {ctl} row_mask:0xf bank_mask:0xf")
        if len(regs) in (3,):
            pass
    A.nop(2)

def allreduce_rows(A, regs, tmps, op="v_add_f32", steps=(16, 32)):
    for st in steps:
        for r, t in zip(regs, tmps):
            A(f"v_mov_b32 {v(t)}, {v(r)}")
        A.nop(2)
        for r, t in zip(regs, tmps):
            A(f"v_permlane{st}_swap_b32 {v(r)}, {v(t)}")
        A.nop(2)
        for r, t in zip(regs, tmps):
            A(f"{op} {v(r)}, {v(r)}, {v(t)}")
        A.nop(1)


WS_STAMP = 0x8000000

class Stamps:
    def __init__(self, A, base=64, on=False, region=0):
        self.A, self.base, self.on, self.n, self.region = A, base, on, 0, region
    def stamp(self):
        if not self.on: return
        b = self.base + 4 * self.n; self.n += 1
        self.A(f"s_memtime {s(b,2)}")
        self.A(f"s_memrealtime {s(b+2,2)}")
        self.A("s_waitcnt lgkmcnt(0)")
    def flush(self, ws_pair, tmp_srd, vtmp):
        if not self.on: return
        A = self.A
        srd(A, tmp_srd, ws_pair, 1 << 18, WS_STAMP + (self.region << 18))
        A(f"v_lshrrev_b32 {v(vtmp)}, 6, v0")
        A(f"s_lshl_b32 {s(tmp_srd+4)}, s2, 2")
        A(f"v_add_u32 {v(vtmp)}, {s(tmp_srd+4)}, {v(vtmp)}")
        A(f"v_lshlrev_b32 {v(vtmp)}, 7, {v(vtmp)}")
        for i in range(self.n):
            b = self.base + 4 * i
            A(f"v_mov_b32 {v(vtmp+2)}, {s(b)}")
            A(f"v_mov_b32 {v(vtmp+3)}, {s(b+2)}")
            A(f"buffer_store_dwordx2 {v(vtmp+2,2)}, {v(vtmp)}, {s(tmp_srd,4)}, 0 offen offset:{8*i}")
            A("s_nop 1")
```

```python
from gen_common import *

K0_NMOD, K0_NCS, K0_NXN = 48, 28, 128
K0_GRID = K0_NMOD + K0_NCS + K0_NXN

def gen_k0(name="k0_kernel"):
    A = Asm()
    A(f"s_cmp_ge_u32 s2, {K0_GRID}")
    A(f"s_cbranch_scc1 {name}_end")
    A(f"s_load_dwordx2 s[4:5], s[0:1], {KA_WS}")
    A(f"s_load_dwordx2 s[6:7], s[0:1], {KA_C}")
    A(f"s_load_dwordx2 s[8:9], s[0:1], {KA_WMOD}")
    A(f"s_load_dwordx2 s[10:11], s[0:1], {KA_W3}")
    A(f"s_load_dwordx2 s[12:13], s[0:1], {KA_X}")
    A("s_waitcnt lgkmcnt(0)")
    A(f"s_cmp_ge_u32 s2, {K0_NMOD + K0_NCS}")
    A(f"s_cbranch_scc1 {name}_xn")
    A(f"s_mov_b32 s24, {512*6144}")
    A(f"s_mov_b32 s25, {512*3584}")
    A("s_mov_b32 s26, 6144")
    A("s_mov_b32 s27, 3584")
    A(f"s_sub_u32 s28, s2, {K0_NMOD}")
    A(f"s_cmp_lt_u32 s2, {K0_NMOD}")
    A("s_cselect_b32 s16, s8, s10")
    A("s_cselect_b32 s17, s9, s11")
    A("s_cselect_b32 s18, s24, s25")
    A("s_cselect_b32 s29, s26, s27")
    A("s_cselect_b32 s30, s2, s28")
    A("s_cselect_b32 s31, 1, 0")
    A("s_and_b32 s17, s17, 0xffff")
    A("s_mov_b32 s19, 0x20000")
    srd(A, 20, 6, 1024)
    A("v_and_b32 v1, 7, v0")
    A("v_lshrrev_b32 v2, 3, v0")
    A("s_lshl_b32 s33, s29, 4")
    A("v_mul_lo_u32 v3, v2, s33")
    A("v_lshl_add_u32 v3, v1, 4, v3")
    A("s_lshl_b32 s34, s30, 7")
    A("v_add_u32 v3, s34, v3")
    A("v_lshlrev_b32 v4, 2, v0")
    A("buffer_load_dword v5, v4, s[20:23], 0 offen")
    A("s_mov_b32 s35, 0")
    for i in range(16):
        A(f"buffer_load_dwordx4 {v(16+4*i,4)}, v3, s[16:19], s35 offen")
        if i < 15:
            A("s_add_u32 s35, s35, s29")
    A("s_waitcnt vmcnt(16)")
    A("v_lshlrev_b32 v6, 16, v5")
    A("v_and_b32 v7, 0xffff0000, v5")
    A(f"v_mul_f32 v8, {f32hex(-math.log2(math.e))}, v6")
    A(f"v_mul_f32 v9, {f32hex(-math.log2(math.e))}, v7")
    A("v_exp_f32 v8, v8")
    A("v_exp_f32 v9, v9")
    A("s_nop 0")
    A("v_add_f32 v8, 1.0, v8")
    A("v_add_f32 v9, 1.0, v9")
    A("v_rcp_f32 v8, v8")
    A("v_rcp_f32 v9, v9")
    A("s_nop 0")
    A("v_mul_f32 v6, v6, v8")
    A("v_mul_f32 v7, v7, v9")
    A("v_cvt_pk_bf16_f32 v8, v6, v7")
    A("v_lshlrev_b32 v6, 16, v8")
    A("v_and_b32 v7, 0xffff0000, v8")
    A("s_cmp_eq_u32 s31, 1")
    A(f"s_cbranch_scc1 {name}_havea")
    A("v_mov_b32 v6, 1.0")
    A("v_mov_b32 v7, 1.0")
    A.label(f"{name}_havea")
    A("v_lshlrev_b32 v4, 3, v0")
    A("ds_write_b64 v4, v[6:7]")
    A("s_waitcnt lgkmcnt(0)")
    A("s_barrier")
    A("v_lshlrev_b32 v4, 6, v2")
    for i in range(4):
        A(f"ds_read_b128 {v(80+4*i,4)}, v4 offset:{16*i}")
    for j in range(8):
        A(f"v_mov_b32 {v(96+j)}, 0")
    A("s_waitcnt lgkmcnt(0)")
    for i in range(16):
        A(f"s_waitcnt vmcnt({15-i})")
        for j in range(4):
            w = 16 + 4*i + j
            A(f"v_lshlrev_b32 v10, 16, {v(w)}")
            A(f"v_and_b32 v11, 0xffff0000, {v(w)}")
            A(f"v_fmac_f32 {v(96+2*j)}, v10, {v(80+i)}")
            A(f"v_fmac_f32 {v(96+2*j+1)}, v11, {v(80+i)}")
    A("v_lshlrev_b32 v4, 8, v2")
    A("v_lshl_add_u32 v4, v1, 5, v4")
    A("ds_write_b128 v4, v[96:99] offset:2048")
    A("ds_write_b128 v4, v[100:103] offset:2064")
    A("s_waitcnt lgkmcnt(0)")
    A("s_barrier")
    A("v_cmp_gt_u32 vcc, 64, v0")
    A("s_and_saveexec_b64 s[36:37], vcc")
    A(f"s_cbranch_execz {name}_end")
    A("v_lshlrev_b32 v4, 2, v0")
    for kg in range(32):
        A(f"ds_read_b32 {v(16+kg)}, v4 offset:{2048+256*kg}")
    A("s_waitcnt lgkmcnt(0)")
    for st in (16, 8, 4, 2, 1):
        for j in range(st):
            A(f"v_add_f32 {v(16+j)}, {v(16+j)}, {v(16+j+st)}")
    A("s_lshl_b32 s34, s30, 8")
    A("v_add_u32 v4, s34, v4")
    A("s_cmp_eq_u32 s31, 1")
    A(f"s_cbranch_scc1 {name}_ismod")
    srd(A, 40, 4, 1792*4, WS_CS3)
    A("buffer_store_dword v16, v4, s[40:43], 0 offen")
    A("s_endpgm")
    A.label(f"{name}_ismod")
    A("v_cvt_pk_bf16_f32 v16, v16, v16")
    A("v_lshlrev_b32 v16, 16, v16")
    A("s_lshr_b32 s38, s30, 3")
    A("s_cmp_eq_u32 s38, 1")
    A("s_cselect_b32 s39, 1, 0")
    A("s_cmp_eq_u32 s38, 4")
    A("s_cselect_b32 s39, 1, s39")
    A("s_cmp_eq_u32 s39, 0")
    A(f"s_cbranch_scc1 {name}_nog")
    A("v_add_f32 v16, 1.0, v16")
    A("v_cvt_pk_bf16_f32 v16, v16, v16")
    A("v_lshlrev_b32 v16, 16, v16")
    A.label(f"{name}_nog")
    srd(A, 40, 4, 3072*4, WS_MOD)
    A("buffer_store_dword v16, v4, s[40:43], 0 offen")
    A("s_cmp_ge_u32 s30, 16")
    A(f"s_cbranch_scc1 {name}_end")
    srd(A, 44, 4, 1024*4, WS_QSG)
    A(f"v_mul_f32 v17, {f32hex(QSCALE)}, v16")
    A("buffer_store_dword v17, v4, s[44:47], 0 offen")
    A("s_endpgm")
    A.label(f"{name}_xn")
    A(f"s_sub_u32 s28, s2, {K0_NMOD + K0_NCS}")
    srd(A, 16, 12, 2048*1024)
    srd(A, 20, 4, 2048*1024, WS_XN)
    A("v_lshrrev_b32 v1, 6, v0")
    A("v_and_b32 v2, 63, v0")
    A("s_lshl_b32 s29, s28, 14")
    A("v_lshlrev_b32 v3, 12, v1")
    A("v_lshl_add_u32 v3, v2, 4, v3")
    for j in range(4):
        A(f"buffer_load_dwordx4 {v(16+4*j,4)}, v3, s[16:19], s29 offen offset:{1024*j}")
    A("v_lshrrev_b32 v4, 2, v2")
    A("v_lshlrev_b32 v4, 10, v4")
    A("v_and_b32 v5, 3, v2")
    A("v_lshl_add_u32 v4, v5, 8, v4")
    A("v_lshl_add_u32 v4, v1, 6, v4")
    A("s_waitcnt vmcnt(0)")
    X = lambda j, e: 32 + 8*j + e
    for j in range(4):
        for e in range(4):
            A(f"v_lshlrev_b32 {v(X(j,2*e))}, 16, {v(16+4*j+e)}")
            A(f"v_and_b32 {v(X(j,2*e+1))}, 0xffff0000, {v(16+4*j+e)}")
    S = [64, 65, 66, 67]; T = [68, 69, 70, 71]
    def rowsum(term):
        for j in range(4):
            term(j)
        allreduce16(A, S)
        allreduce_rows(A, S, T)
    def t1(j):
        A(f"v_add_f32 {v(S[j])}, {v(X(j,0))}, {v(X(j,1))}")
        for e in range(2, 8):
            A(f"v_add_f32 {v(S[j])}, {v(S[j])}, {v(X(j,e))}")
    rowsum(t1)
    for j in range(4):
        A(f"v_mul_f32 {v(S[j])}, {f32hex(1/512)}, {v(S[j])}")
    for j in range(4):
        for e in range(8):
            A(f"v_sub_f32 {v(X(j,e))}, {v(X(j,e))}, {v(S[j])}")
    def t2(j):
        A(f"v_mul_f32 {v(S[j])}, {v(X(j,0))}, {v(X(j,0))}")
        for e in range(1, 8):
            A(f"v_fmac_f32 {v(S[j])}, {v(X(j,e))}, {v(X(j,e))}")
    rowsum(t2)
    A(f"s_mov_b32 s30, {f32hex(1e-5)}")
    for j in range(4):
        A(f"v_mov_b32 {v(T[j])}, s30")
    for j in range(4):
        A(f"v_fmac_f32 {v(T[j])}, {f32hex(1/512)}, {v(S[j])}")
    for j in range(4):
        A(f"v_rsq_f32 {v(T[j])}, {v(T[j])}")
    A("s_nop 0")
    for j in range(4):
        for e in range(8):
            A(f"v_mul_f32 {v(X(j,e))}, {v(X(j,e))}, {v(T[j])}")
    for j in range(4):
        for e in range(4):
            A(f"v_cvt_pk_f16_f32 {v(16+4*j+e)}, {v(X(j,2*e))}, {v(X(j,2*e+1))}")
    for j in range(4):
        A(f"buffer_store_dwordx4 {v(16+4*j,4)}, v4, s[20:23], s29 offen offset:{16*j}")
    A.label(f"{name}_end")
    A("s_endpgm")
    return dict(name=name, asm=A, grid=K0_GRID, block=256, lds=2048 + 8192, nv=104, acc=104, ns=56)
```

```python
from gen_common import *

SIG = (0, 2, 1, 3)
LDS_MOD = 131072
K1_LDS = LDS_MOD + 4096 + 256

class VmQ:
    def __init__(self, A):
        self.A = A; self.q = []
    def issue(self, text, tag):
        self.A(text); self.q.append(tag)
        assert len(self.q) <= 63, "vmcnt overflow"
    def count_for(self, tags):
        last = -1
        for i, t in enumerate(self.q):
            if t in tags: last = i
        return None if last < 0 else len(self.q) - 1 - last
    def wait(self, *tags, extra=""):
        n = self.count_for(tags)
        if n is None:
            if extra: self.A(f"s_waitcnt {extra}")
            return
        self.A(f"s_waitcnt vmcnt({n}) {extra}".rstrip())
        self.q = self.q[len(self.q) - n:] if n else []

def interleave(A, mfmas, gaps):
    for i, m in enumerate(mfmas):
        A(m)
        for f in gaps[i]:
            f() if callable(f) else A(f)

def gen_k1(name="k1_kernel", stamps=False):
    A = Asm()
    ST = Stamps(A, 64, stamps)
    sKs, sVs, sWQ, sXN, sQS, sOs = 8, 12, 16, 20, 24, 28
    sW, sHead, sQblk, sTile, sWb, sTmp, sTmp2, sIter = 32, 33, 34, 35, 36, 37, 38, 39
    sXo = 40
    sRb = 44
    O0 = 128
    def Oacc(db, qb): return O0 + (db * 4 + qb) * 4
    Qf = lambda qb, ks: (qb * 4 + ks) * 4
    KF = lambda buf, f: 64 + buf * 32 + f * 4
    VF = lambda buf, db: 128 + buf * 32 + db * 4
    ONES = 192
    vLane, vTmp = 1, 2
    vXNo = 4
    vWQ = 8
    vGS = 10
    vT = 12
    AW = 20
    GS = 28
    XR = 60
    vKD = 124
    vVD = 2
    KAd = lambda ks, hi: 8 + ks * 2 + hi
    VAd = lambda db, hi: 16 + db * 2 + hi
    Sb = lambda buf: 32 + buf * 8
    Pb = lambda buf: 48 + buf * 4
    NM = lambda qb: 56 + qb * 4
    Lacc = lambda qb: 72 + qb * 4
    TM = 88

    A("s_cmp_ge_u32 s2, 256")
    A(f"s_cbranch_scc1 {name}_end")
    A(f"s_load_dwordx2 s[4:5], s[0:1], {KA_WS}")
    A(f"s_load_dwordx4 s[48:51], s[0:1], {KA_K}")
    A(f"s_load_dwordx2 s[52:53], s[0:1], {KA_WQ}")
    A(f"v_lshrrev_b32 {v(vTmp)}, 6, v0")
    A(f"v_and_b32 {v(vLane)}, 63, v0")
    A("s_and_b32 s33, s2, 7")
    A("s_lshl_b32 s33, s33, 2")
    A("s_lshr_b32 s37, s2, 3")
    A("s_and_b32 s37, s37, 3")
    A(f"s_add_u32 {s(sHead)}, s33, s37")
    A(f"s_lshr_b32 {s(sQblk)}, s2, 5")
    A(f"v_readfirstlane_b32 {s(sW)}, {v(vTmp)}")
    A("s_waitcnt lgkmcnt(0)")
    A(f"s_lshl_b32 {s(sTmp)}, {s(sHead)}, 19")
    for d, b in ((sKs, 48), (sVs, 50)):
        A(f"s_add_u32 {s(d)}, {s(b)}, {s(sTmp)}")
        A(f"s_addc_u32 {s(d+1)}, {s(b+1)}, 0")
        A(f"s_and_b32 {s(d+1)}, {s(d+1)}, 0xffff")
        A(f"s_mov_b32 {s(d+2)}, 524288")
        A(f"s_mov_b32 {s(d+3)}, 0x20000")
    A(f"s_lshl_b32 {s(sTmp)}, {s(sHead)}, 8")
    A(f"s_add_u32 {s(sWQ)}, s52, {s(sTmp)}")
    A(f"s_addc_u32 {s(sWQ+1)}, s53, 0")
    A(f"s_and_b32 {s(sWQ+1)}, {s(sWQ+1)}, 0xffff")
    A(f"s_sub_u32 {s(sWQ+2)}, {512*8192}, {s(sTmp)}")
    A(f"s_mov_b32 {s(sWQ+3)}, 0x20000")
    srd(A, sXN, 4, 2048*1024, WS_XN)
    srd(A, sQS, 4, 4096, WS_QSG)
    srd(A, sOs, 4, 2048*8192, WS_O)
    for i in range(4):
        A(f"s_mov_b32 {s(sXo+i)}, {4096*i}")
    A(f"s_lshl_b32 {s(sRb)}, {s(sQblk)}, 4")
    A(f"s_lshl_b32 {s(sTmp)}, {s(sW)}, 2")
    A(f"s_add_u32 {s(sRb)}, {s(sRb)}, {s(sTmp)}")
    li, lg = 12, 13
    A(f"v_and_b32 {v(li)}, 15, {v(vLane)}")
    A(f"v_lshrrev_b32 {v(lg)}, 4, {v(vLane)}")
    A(f"s_lshl_b32 {s(sTmp)}, {s(sRb)}, 14")
    A(f"v_lshlrev_b32 {v(14)}, 4, {v(vLane)}")
    A(f"v_add_u32 {v(vXNo)}, {s(sTmp)}, {v(14)}")
    for qb in range(1, 4):
        A(f"v_add_u32 {v(vXNo+qb)}, {16384*qb}, {v(vXNo)}")
    A(f"s_lshl_b32 {s(sTmp)}, {s(sW)}, 5")
    A(f"v_add_u32 {v(14)}, {s(sTmp)}, {v(lg)}")
    A(f"v_lshlrev_b32 {v(14)}, 13, {v(14)}")
    for u in range(2):
        A(f"v_or_b32 {v(15)}, {4*u}, {v(lg)}")
        A(f"v_lshlrev_b32 {v(15)}, 1, {v(15)}")
        A(f"v_xor_b32 {v(15)}, {v(15)}, {v(li)}")
        A(f"v_lshl_add_u32 {v(vWQ+u)}, {v(15)}, 4, {v(14)}")
    A(f"s_lshl_b32 {s(sTmp)}, {s(sW)}, 4")
    A(f"v_add_u32 {v(14)}, {s(sTmp)}, {v(lg)}")
    A(f"v_lshlrev_b32 {v(14)}, 8, {v(14)}")
    for m in range(4):
        A(f"v_or_b32 {v(15)}, {4*m}, {v(lg)}")
        A(f"v_xor_b32 {v(15)}, {v(15)}, {v(li)}")
        A(f"v_lshl_add_u32 {v(vKD+m)}, {v(15)}, 4, {v(14)}")
    for u in range(2):
        A(f"v_or_b32 {v(15)}, {4*u}, {v(lg)}")
        A(f"v_lshlrev_b32 {v(15)}, 1, {v(15)}")
        A(f"v_xor_b32 {v(15)}, {v(15)}, {v(li)}")
        A(f"v_lshl_add_u32 {v(vVD+u)}, {v(15)}, 4, {v(14)}")
    tr_r, tr_c, tr_f, tr_lo = 14, 15, 16, 17
    def tr_parts():
        A(f"v_and_b32 {v(li)}, 15, {v(vLane)}")
        A(f"v_lshrrev_b32 {v(lg)}, 4, {v(vLane)}")
        A(f"v_lshrrev_b32 {v(tr_r)}, 2, {v(li)}")
        A(f"v_and_b32 {v(tr_c)}, 3, {v(li)}")
        A(f"v_and_b32 {v(tr_f)}, 1, {v(lg)}")
        A(f"v_lshl_or_b32 {v(tr_f)}, {v(tr_f)}, 2, {v(tr_r)}")
        A(f"v_lshlrev_b32 {v(tr_lo)}, 3, {v(tr_c)}")
    tr_parts()
    A(f"v_lshl_add_u32 {v(18)}, {v(lg)}, 3, {v(tr_r)}")
    A(f"v_lshl_add_u32 {v(18)}, {v(18)}, 8, {v(tr_lo)}")
    for db in range(8):
        A(f"v_xor_b32 {v(19)}, {db}, {v(tr_f)}")
        A(f"v_lshl_add_u32 {v(AW+db)}, {v(19)}, 5, {v(18)}")
    A(f"v_lshlrev_b32 {v(vGS)}, 5, {v(lg)}")
    A(f"v_add_u32 {v(vGS)}, {LDS_MOD}, {v(vGS)}")

    ST.stamp()
    Q = VmQ(A)
    A(f"s_lshl_b32 {s(sTmp)}, {s(sW)}, 10")
    A(f"s_add_u32 m0, {s(sTmp)}, {LDS_MOD}")
    A(f"v_lshlrev_b32 {v(14)}, 4, {v(vLane)}")
    Q.issue(f"buffer_load_dwordx4 {v(14)}, {s(sQS,4)}, {s(sTmp)} offen lds", "mod")
    A(f"s_lshl_b32 {s(sWb)}, {s(sW)}, 13")
    def wq_dma(c, m):
        A(f"s_add_u32 m0, {s(sWb)}, {c*32768 + m*1024}")
        A(f"s_mov_b32 {s(sTmp2)}, {(128*c + 4*m)*8192}")
        Q.issue(f"buffer_load_dwordx4 {v(vWQ + ((m>>1)&1))}, {s(sWQ,4)}, {s(sTmp2)} offen lds", f"wq{c}")
    def xn_load(ks, qb):
        r = XR + (ks % 4) * 16 + qb * 4
        Q.issue(f"buffer_load_dwordx4 {v(r,4)}, {v(vXNo+qb)}, {s(sXN,4)}, {s(sXo + (ks>>2))} offen offset:{(ks&3)*1024}", f"xn{ks}")
    for m in range(8): wq_dma(0, m)
    for ks in range(2):
        for qb in range(4): xn_load(ks, qb)
    for m in range(8): wq_dma(1, m)
    for qb in range(4): xn_load(2, qb)
    for m in range(8): wq_dma(2, m)
    for m in range(8): wq_dma(3, m)
    for r in range(O0, O0 + 128):
        A(f"v_mov_b32 {v(r)}, 0")
    def a_reads(ks):
        out = []
        for db in range(8):
            for j in range(2):
                off = ((ks >> 2) & 1) * 32768 + (ks & 3) * 8192 + j * 1024
                out.append(f"ds_read_b64_tr_b16 {a(KF(ks & 1, db) + 2*j, 2)}, {v(AW+db)} offset:{off}")
        return out
    def gs_reads(ks):
        b = GS + (ks & 1) * 16
        return [f"ds_read_b128 {v(b + 4*i, 4)}, {v(vGS)} offset:{(i >> 1) * 2048 + ks * 128 + (i & 1) * 16}" for i in range(4)]
    def modulate(ks):
        b = GS + (ks & 1) * 16
        out = []
        for qb in range(4):
            r = XR + (ks % 4) * 16 + qb * 4
            for j in range(4):
                t0, t1 = vT + 2*(j & 1), vT + 2*(j & 1) + 1
                out.append(f"v_fma_mix_f32 {v(t0)}, {v(r+j)}, {v(b+8+2*j)}, {v(b+2*j)} op_sel:[0,0,0] op_sel_hi:[1,0,0]")
                out.append(f"v_fma_mix_f32 {v(t1)}, {v(r+j)}, {v(b+8+2*j+1)}, {v(b+2*j+1)} op_sel:[1,0,0] op_sel_hi:[1,0,0]")
                out.append(f"v_cvt_pk_bf16_f32 {v(r+j)}, {v(t0)}, {v(t1)}")
        return out
    Q.wait("mod", "wq0")
    A("s_barrier")
    ST.stamp()
    for x in gs_reads(0) + gs_reads(1) + a_reads(0): A(x)
    Q.wait("xn0", extra="lgkmcnt(0)")
    for x in modulate(0): A(x)
    A.nop(2)
    def kv_dma(t, n, q=True):
        stage = t % 4
        txt = []
        if n == 0: txt.append(f"s_add_u32 m0, {s(sWb)}, {stage*32768}")
        if n == 4: txt.append(f"s_add_u32 m0, {s(sWb)}, {stage*32768 + 16384}")
        if n < 4: ld = f"buffer_load_dwordx4 {v(vKD+n)}, {s(sKs,4)}, {s(sTile)} offen offset:{1024*n} lds"
        else: ld = f"buffer_load_dwordx4 {v(vVD+((n-4)&1))}, {s(sVs,4)}, {s(sTile)} offen offset:{1024*(n-4)} lds"
        return txt, ld
    for ks in range(16):
        mf = []
        for db in range(8):
            for qb in range(4):
                d = Oacc(db, qb)
                mf.append(f"v_mfma_f32_16x16x32_bf16 {v(d,4)}, {a(KF(ks & 1, db),4)}, {v(XR + (ks % 4)*16 + qb*4, 4)}, {v(d,4)}")
        gaps = [[] for _ in range(32)]
        pre = []
        if ks < 15:
            nxt = ks + 1
            if nxt % 4 == 0:
                pre.append(lambda c=nxt // 4: Q.wait(f"wq{c}"))
                pre.append("s_barrier")
                if nxt == 8:
                    pre += [f"v_add_u32 {v(AW+db)}, 0x10000, {v(AW+db)}" for db in range(8)]
            ds = a_reads(nxt) + (gs_reads(ks + 2) if ks + 2 < 16 else [])
            va = modulate(nxt)
            pre.append(lambda k=nxt: Q.wait(f"xn{k}"))
            idx = 0
            for i in range(32):
                if i < len(ds): gaps[i].append(ds[i])
            slots = [i for i in range(32)]
            per = [0] * 32
            k = 0
            cap = [1 if i < len(ds) else 2 for i in range(32)]
            extra = len(va) - sum(cap)
            i = 31
            while extra > 0:
                cap[i] += 1; extra -= 1; i -= 4
                if i < 0: i = 30
            for i in range(32):
                for _ in range(cap[i]):
                    if k < len(va): gaps[i].append(va[k]); k += 1
            assert k == len(va)
            if ks + 3 < 16:
                for qb in range(4):
                    gaps[3 + 8*qb].append(lambda k=ks + 3, q=qb: xn_load(k, q))
        if ks >= 8:
            t = (ks - 8) // 4
            for n2 in range(2):
                n = ((ks - 8) % 4) * 2 + n2
                def emit(t=t, n=n):
                    txt, ld = kv_dma(t, n)
                    if n == 0: A(f"s_mov_b32 {s(sTile)}, {t*16384}");
                    if n == 0 and t == 0: A(f"s_lshl_b32 {s(sWb)}, {s(sW)}, 12")
                    for x in txt: A(x)
                    A("s_nop 0")
                    Q.issue(ld, f"kv{t}")
                gaps[5 + 16*n2].append(emit)
        for f in pre:
            f() if callable(f) else A(f)
        if ks < 15:
            pass
        interleave(A, mf, gaps)
        if ks < 15:
            A("s_waitcnt lgkmcnt(0)")
            A.nop(1)
    ST.stamp()
    A.nop(8)
    for qb in range(4):
        for ks in range(4):
            x0, x1 = Oacc(2*ks, qb), Oacc(2*ks+1, qb)
            t = vT + (ks & 1) * 4
            A(f"v_cvt_pk_bf16_f32 {v(t)}, {v(x0)}, {v(x0+1)}")
            A(f"v_cvt_pk_bf16_f32 {v(t+1)}, {v(x0+2)}, {v(x0+3)}")
            A(f"v_cvt_pk_bf16_f32 {v(t+2)}, {v(x1)}, {v(x1+1)}")
            A(f"v_cvt_pk_bf16_f32 {v(t+3)}, {v(x1+2)}, {v(x1+3)}")
            for r in range(4):
                A(f"v_mov_b32 {v(x0+r)}, 0")
            A(f"v_permlane16_swap_b32 {v(t)}, {v(t+2)}")
            A(f"v_permlane16_swap_b32 {v(t+1)}, {v(t+3)}")
            for r in range(4):
                A(f"v_mov_b32 {v(x1+r)}, 0")
            for r in range(4):
                A(f"v_accvgpr_write_b32 {a(Qf(qb,ks)+r)}, {v(t+r)}")
    li, lg = TM, TM + 1
    tr_r, tr_c, tr_f, tr_lo = TM + 2, TM + 3, TM + 4, TM + 5
    tr_parts()
    A(f"v_and_b32 {v(TM+6)}, 1, {v(lg)}")
    A(f"v_lshlrev_b32 {v(TM+6)}, 1, {v(TM+6)}")
    A(f"v_lshrrev_b32 {v(TM+7)}, 1, {v(lg)}")
    A(f"v_or_b32 {v(TM+6)}, {v(TM+6)}, {v(TM+7)}")
    A(f"v_lshlrev_b32 {v(TM+7)}, 8, {v(li)}")
    for ks in range(4):
        A(f"v_or_b32 {v(TM+8)}, {4*ks}, {v(TM+6)}")
        A(f"v_xor_b32 {v(TM+8)}, {v(TM+8)}, {v(li)}")
        A(f"v_lshl_add_u32 {v(KAd(ks,0))}, {v(TM+8)}, 4, {v(TM+7)}")
        A(f"v_add_u32 {v(KAd(ks,1))}, 0x10000, {v(KAd(ks,0))}")
    vOst = 9 + 115
    A(f"v_lshl_add_u32 {v(TM+7)}, {v(lg)}, 2, {v(tr_r)}")
    A(f"v_lshl_add_u32 {v(TM+7)}, {v(TM+7)}, 8, {v(tr_lo)}")
    for db in range(8):
        A(f"v_xor_b32 {v(TM+8)}, {db}, {v(tr_f)}")
        A(f"v_lshl_add_u32 {v(VAd(db,0))}, {v(TM+8)}, 5, {v(TM+7)}")
        A(f"v_add_u32 {v(VAd(db,1))}, 0x10000, {v(VAd(db,0))}")
    A(f"v_mov_b32 {v(TM)}, 0x3f803f80")
    for r in range(4):
        A(f"v_accvgpr_write_b32 {a(ONES+r)}, {v(TM)}")
    A(f"v_mov_b32 {v(TM)}, 0")
    for r in range(32):
        A(f"v_accvgpr_write_b32 {a(VF(1,0)+r)}, {v(TM)}")
    for r in range(16):
        A(f"v_mov_b32 {v(Lacc(0)+r)}, 0")
    for r in range(4):
        A(f"v_mov_b32 {v(Pb(1)+r)}, 0")

    def k_read(G, f):
        t = (G >> 1) % 4; kb, ks = f >> 2, f & 3
        off = (t & 1) * 32768 + (G & 1) * 8192 + kb * 4096
        return f"ds_read_b128 {a(KF(G & 1, f),4)}, {v(KAd(ks, t >> 1))} offset:{off}"
    def v_read(G, db, j):
        t = (G >> 1) % 4
        off = (t & 1) * 32768 + 16384 + (G & 1) * 8192 + j * 4096
        return f"ds_read_b64_tr_b16 {a(VF(G & 1, db) + 2*j, 2)}, {v(VAd(db, t >> 1))} offset:{off}"
    def qk(G, qb, dst, c):
        out = []
        for kb in range(2):
            for ks in range(4):
                d = dst + 4*kb
                cc = (c if c == "0" else v(c, 4)) if ks == 0 else v(d, 4)
                out.append(f"v_mfma_f32_16x16x32_bf16 {v(d,4)}, {a(KF(G & 1, kb*4+ks),4)}, {a(Qf(qb,ks),4)}, {cc}")
        return out
    Q.wait("kv0", "kv1")
    A("s_barrier")
    A(f"s_mov_b32 {s(sTile)}, {2*16384}")
    for n in range(5):
        txt, ld = kv_dma(2, n)
        for x in txt: A(x)
        A("s_nop 0")
        A(ld)
    for f in range(8): A(k_read(0, f))
    A("s_waitcnt lgkmcnt(0)")
    for qb in range(4):
        for m in qk(0, qb, TM + 8*qb, "0"): A(m)
    A.nop(8)
    mx = [Sb(0) + qb for qb in range(4)]
    for qb in range(4):
        b = TM + 8*qb
        A(f"v_max3_f32 {v(mx[qb])}, {v(b)}, {v(b+1)}, {v(b+2)}")
    for qb in range(4):
        b = TM + 8*qb
        A(f"v_max3_f32 {v(mx[qb])}, {v(mx[qb])}, {v(b+3)}, {v(b+4)}")
    for qb in range(4):
        b = TM + 8*qb
        A(f"v_max3_f32 {v(mx[qb])}, {v(mx[qb])}, {v(b+5)}, {v(b+6)}")
    for qb in range(4):
        b = TM + 8*qb
        A(f"v_max_f32 {v(mx[qb])}, {v(mx[qb])}, {v(b+7)}")
    allreduce_rows(A, mx, [Sb(0) + 4 + qb for qb in range(4)], op="v_max_f32")
    for qb in range(4):
        for r in range(4):
            A(f"v_sub_f32 {v(NM(qb)+r)}, 0, {v(mx[qb])}")
    A.label(f"{name}_restart")
    for x in [k_read(1, 0), k_read(1, 1)]: A(x)
    for db in range(6):
        for j in range(2): A(v_read(0, db, j))
    A.nop(2)
    for m in qk(0, 0, Sb(0), NM(0)): A(m)
    A("s_waitcnt lgkmcnt(0)")
    ST.stamp()
    A(f"s_mov_b32 {s(sIter)}, 8")
    A.nop(6)
    A.raw(".p2align 6")
    A.label(f"{name}_loop")
    for tt in range(4):
        for ls in range(8):
            kg, p = ls >> 2, ls & 3
            G = 2*tt + kg
            j = 8*tt + ls
            Gn, qn = (G, p + 1) if p < 3 else (G + 1, 0)
            Gp, qp = (G, p - 1) if p > 0 else (G - 1, 3)
            mf = qk(Gn, qn, Sb((j + 1) & 1), NM(qn))
            for db in range(8):
                d = Oacc(db, qp)
                mf.append(f"v_mfma_f32_16x16x32_bf16 {v(d,4)}, {a(VF(Gp & 1, db),4)}, {v(Pb((j-1) & 1),4)}, {v(d,4)}")
            d = Lacc(qp)
            mf.append(f"v_mfma_f32_16x16x32_bf16 {v(d,4)}, {a(ONES,4)}, {v(Pb((j-1) & 1),4)}, {v(d,4)}")
            sb, pb = Sb(j & 1), Pb(j & 1)
            E = [f"v_exp_f32 {v(sb+i)}, {v(sb+i)}" for i in range(8)]
            C = [f"v_cvt_pk_bf16_f32 {v(pb+i)}, {v(sb+2*i)}, {v(sb+2*i+1)}" for i in range(4)]
            if p == 3: kr = [k_read(G + 2, 0), k_read(G + 2, 1)]
            else: kr = [k_read(G + 1, 2 + 2*p), k_read(G + 1, 3 + 2*p)]
            if p == 0: vr = [v_read(G, db, jj) for db in (6, 7) for jj in range(2)]
            else: vr = [v_read(G + 1, db, jj) for db in (2*(p-1), 2*(p-1) + 1) for jj in range(2)]
            DS = kr + vr
            if ls >= 3: T, n = tt + 3, ls - 3
            else: T, n = tt + 2, ls + 5
            txt, ld = kv_dma(T, n)
            gaps = [[] for _ in range(17)]
            for i in range(8): gaps[2*i].append(E[i])
            for i in range(6): gaps[2*i + 1].append(DS[i])
            gaps[3].append(C[0]); gaps[7].append(C[1]); gaps[11].append(C[2]); gaps[15].append(C[3])
            for x in txt: gaps[9].append(x)
            gaps[13].append(ld)
            if p == 1: gaps[5].append("s_waitcnt lgkmcnt(3)")
            if ls == 2:
                gaps[16] += ["s_waitcnt vmcnt(8) lgkmcnt(4)", "s_barrier"]
                gaps[15].append(f"s_add_u32 {s(sTile)}, {s(sTile)}, 16384")
                gaps[16].append(f"s_min_u32 {s(sTile)}, {s(sTile)}, {31*16384}")
            elif p == 2:
                gaps[16].append("s_waitcnt lgkmcnt(4)")
            if tt == 3 and ls == 7:
                gaps[1].append(f"s_sub_u32 {s(sIter)}, {s(sIter)}, 1")
                gaps[16] += [f"s_cmp_lg_u32 {s(sIter)}, 0", f"s_cbranch_scc1 {name}_loop"]
            interleave(A, mf, gaps)
    A.nop(1)
    for db in range(8):
        d = Oacc(db, 3)
        A(f"v_mfma_f32_16x16x32_bf16 {v(d,4)}, {a(VF(1, db),4)}, {v(Pb(1),4)}, {v(d,4)}")
    A(f"v_mfma_f32_16x16x32_bf16 {v(Lacc(3),4)}, {a(ONES,4)}, {v(Pb(1),4)}, {v(Lacc(3),4)}")
    ST.stamp()
    A("s_waitcnt vmcnt(0)")
    A(f"v_lshlrev_b32 {v(10)}, 4, {v(vLane)}")
    A(f"s_lshl_b32 {s(sTmp)}, {s(sRb)}, 17")
    A(f"s_lshl_b32 {s(sTmp2)}, {s(sHead)}, 12")
    A(f"s_add_u32 {s(sTmp)}, {s(sTmp)}, {s(sTmp2)}")
    A.nop(4)
    for qb in range(4):
        A(f"v_rcp_f32 {v(12+qb)}, {v(Lacc(qb))}")
    A.nop(1)
    for qb in range(4):
        for m in range(4):
            x0, x1 = Oacc(2*m, qb), Oacc(2*m+1, qb)
            t = 16 + ((qb*4 + m) % 4) * 4
            for r in range(4):
                A(f"v_mul_f32 {v(x0+r)}, {v(x0+r)}, {v(12+qb)}")
                A(f"v_mul_f32 {v(x1+r)}, {v(x1+r)}, {v(12+qb)}")
            A(f"v_cvt_pk_bf16_f32 {v(t)}, {v(x0)}, {v(x0+1)}")
            A(f"v_cvt_pk_bf16_f32 {v(t+1)}, {v(x0+2)}, {v(x0+3)}")
            A(f"v_cvt_pk_bf16_f32 {v(t+2)}, {v(x1)}, {v(x1+1)}")
            A(f"v_cvt_pk_bf16_f32 {v(t+3)}, {v(x1+2)}, {v(x1+3)}")
            A(f"buffer_store_dwordx4 {v(t,4)}, {v(10)}, {s(sOs,4)}, {s(sTmp)} offen offset:{1024*m}")
        if qb < 3:
            A(f"s_add_u32 {s(sTmp)}, {s(sTmp)}, 131072")
    if stamps:
        A("s_waitcnt vmcnt(0)")
        ST.stamp()
        ST.flush(4, 56, 8)
    A.label(f"{name}_end")
    A("s_endpgm")
    return dict(name=name, asm=A, grid=256, block=256, lds=K1_LDS, nv=512, acc=256, ns=96)
```

```python
from gen_common import *
from gen_k1 import VmQ

WS_EB = 0x8000
WS_CONST = 0xC000

class Gemm:
    def __init__(self, A, name, NB, RB, nks, CK, RD, pitch, PD=None):
        self.A, self.name = A, name
        self.PD = PD if PD is not None else (nks // CK if nks // CK <= RD else RD - 1)
        self.NB, self.RB, self.nks, self.CK, self.RD, self.pitch = NB, RB, nks, CK, RD, pitch
        self.rowb = NB * 32
        self.ksb = 32 * self.rowb
        self.ndma = self.ksb // 1024 // 4
        self.nch = nks // CK
        assert nks % CK == 0
        self.lds_bytes = self.ksb * CK * min(RD, self.nch)
        self.WF = lambda buf, nb: buf * NB * 4 + nb * 4
        self.act0 = 2 * NB * 4
        self.nact = min(RD, self.nch) * CK
        self.AF = lambda ks, rb: self.act0 + ((ks % self.nact) * RB + rb) * 4
        self.agprs = self.act0 + self.nact * RB * 4

    def setup(self, vLane, sW, sCol0B, regs):
        A = self.A; NB = self.NB
        self.r = regs
        t = regs["tmp"]
        li, lg, tr, tc, tf, tb = t, t+1, t+2, t+3, t+4, t+5
        vWD, vTR = regs["vWD"], regs["vTR"]
        if NB == 4:
            A(f"v_lshrrev_b32 {v(lg)}, 3, {v(vLane)}")
            A(f"v_and_b32 {v(li)}, 7, {v(vLane)}")
            A(f"v_lshrrev_b32 {v(tf)}, 1, {v(lg)}")
            A(f"v_lshlrev_b32 {v(tf)}, 1, {v(tf)}")
            A(f"v_xor_b32 {v(li)}, {v(li)}, {v(tf)}")
            A(f"s_lshl_b32 {s(regs['sT'])}, {s(sW)}, 3")
            A(f"v_add_u32 {v(lg)}, {s(regs['sT'])}, {v(lg)}")
            A(f"s_mov_b32 {s(regs['sT'])}, {self.pitch}")
            A(f"v_mul_lo_u32 {v(lg)}, {v(lg)}, {s(regs['sT'])}")
            A(f"v_lshl_add_u32 {v(vWD)}, {v(li)}, 4, {v(lg)}")
            A(f"v_add_u32 {v(vWD)}, {s(sCol0B)}, {v(vWD)}")
            A(f"s_lshl_b32 {s(regs['sM0'])}, {s(sW)}, 10")
        else:
            assert NB == 8
            A(f"v_lshrrev_b32 {v(lg)}, 4, {v(vLane)}")
            A(f"v_and_b32 {v(li)}, 15, {v(vLane)}")
            A(f"s_lshl_b32 {s(regs['sT'])}, {s(sW)}, 3")
            A(f"v_add_u32 {v(tb)}, {s(regs['sT'])}, {v(lg)}")
            A(f"s_mov_b32 {s(regs['sT'])}, {self.pitch}")
            A(f"v_mul_lo_u32 {v(tb)}, {v(tb)}, {s(regs['sT'])}")
            A(f"v_add_u32 {v(tb)}, {s(sCol0B)}, {v(tb)}")
            for m in range(2):
                A(f"v_or_b32 {v(tf)}, {4*m}, {v(lg)}")
                A(f"v_lshlrev_b32 {v(tf)}, 1, {v(tf)}")
                A(f"v_xor_b32 {v(tf)}, {v(tf)}, {v(li)}")
                A(f"v_lshl_add_u32 {v(vWD+m)}, {v(tf)}, 4, {v(tb)}")
                if m == 1:
                    A(f"v_add_u32 {v(vWD+m)}, {4*self.pitch}, {v(vWD+m)}")
            A(f"s_lshl_b32 {s(regs['sM0'])}, {s(sW)}, 11")
        A(f"v_and_b32 {v(li)}, 15, {v(vLane)}")
        A(f"v_lshrrev_b32 {v(lg)}, 4, {v(vLane)}")
        A(f"v_lshrrev_b32 {v(tr)}, 2, {v(li)}")
        A(f"v_and_b32 {v(tc)}, 3, {v(li)}")
        A(f"v_lshl_add_u32 {v(tb)}, {v(lg)}, 2, {v(tr)}")
        if NB == 4:
            A(f"v_lshrrev_b32 {v(tf)}, 1, {v(tb)}")
            A(f"v_and_b32 {v(tf)}, 3, {v(tf)}")
            A(f"v_lshlrev_b32 {v(tb)}, 7, {v(tb)}")
        else:
            A(f"v_and_b32 {v(tf)}, 7, {v(tb)}")
            A(f"v_lshlrev_b32 {v(tb)}, 8, {v(tb)}")
        A(f"v_lshl_add_u32 {v(tb)}, {v(tc)}, 3, {v(tb)}")
        self.nhi = (self.lds_bytes + 65535) // 65536
        for nb in range(NB):
            A(f"v_xor_b32 {v(tr)}, {nb}, {v(tf)}")
            A(f"v_lshl_add_u32 {v(vTR + nb*self.nhi)}, {v(tr)}, 5, {v(tb)}")
            for h in range(1, self.nhi):
                A(f"v_add_u32 {v(vTR + nb*self.nhi + h)}, {65536*h}, {v(vTR + nb*self.nhi)}")

    def lds_off(self, ks):
        c, i = divmod(ks, self.CK)
        return ((c % self.RD) * self.CK + i) * self.ksb

    def w_dma(self, Q, sW_srd, ks):
        A = self.A; r = self.r
        for m in range(self.ndma):
            A(f"s_add_u32 m0, {s(r['sM0'])}, {self.lds_off(ks) + m*1024}")
            A(f"s_mov_b32 {s(r['sSo'])}, {ks * 32 * self.pitch}")
            Q.issue(f"buffer_load_dwordx4 {v(r['vWD']+m)}, {s(sW_srd,4)}, {s(r['sSo'])} offen lds", f"w{ks // self.CK}")

    def w_reads(self, ks):
        out = []
        for nb in range(self.NB):
            for j in range(2):
                off = self.lds_off(ks) + j * 16 * self.rowb
                hi, lo = divmod(off, 65536)
                out.append(f"ds_read_b64_tr_b16 {a(self.WF(ks & 1, nb) + 2*j, 2)}, {v(self.r['vTR'] + nb*self.nhi + hi)} offset:{lo}")
        return out

    def run(self, Q, sW_srd, act_load, acc, extra_mfma=None, extra_ds=None, pre_issue=None, mid=None, late=None):
        A = self.A; CK, RD, nks = self.CK, self.RD, self.nks
        npre = min(self.PD, self.nch)
        for c in range(npre):
            for i in range(CK):
                ks = c * CK + i
                self.w_dma(Q, sW_srd, ks)
                for rb in range(self.RB): act_load(ks, rb)
            if c == 0 and pre_issue: pre_issue()
        if mid: mid()
        Q.wait("w0", "a0")
        A("s_barrier")
        for x in self.w_reads(0) + (extra_ds(0) if extra_ds else []): A(x)
        for ks in range(nks):
            c, i = divmod(ks, CK)
            A("s_waitcnt lgkmcnt(0)")
            if i == CK - 1 and c + 1 < self.nch:
                Q.wait(f"w{c+1}", f"a{c+1}")
                A("s_barrier")
            mf = []
            for nb in range(self.NB):
                for rb in range(self.RB):
                    d = acc(rb, nb)
                    mf.append(f"v_mfma_f32_16x16x32_bf16 {v(d,4)}, {a(self.WF(ks & 1, nb),4)}, {a(self.AF(ks, rb),4)}, {v(d,4)}")
            if extra_mfma: mf += extra_mfma(ks)
            ds = self.w_reads(ks + 1) if ks + 1 < nks else []
            if extra_ds and ks + 1 < nks: ds = ds + extra_ds(ks + 1)
            loads = []
            if late and ks == late[0]: loads.append(late[1])
            if c + self.PD < self.nch:
                k2 = (c + self.PD) * CK + i
                loads.append(lambda k2=k2: self.w_dma(Q, sW_srd, k2))
                for rb in range(self.RB): loads.append(lambda k2=k2, rb=rb: act_load(k2, rb))
            n = len(mf)
            per = -(-len(ds) // n)
            for q, m in enumerate(mf):
                A(m)
                for x in ds[q*per:(q+1)*per]: A(x)
                if q == n - 1:
                    for f in loads: f()

def wg_map64(A, sRg, sCb):
    A("s_and_b32 s33, s2, 7")
    A("s_lshl_b32 s33, s33, 2")
    A("s_lshr_b32 s34, s2, 3")
    A("s_and_b32 s34, s34, 3")
    A(f"s_add_u32 {s(sRg)}, s33, s34")
    A(f"s_lshr_b32 {s(sCb)}, s2, 5")

def common_start(A, name, grid, loads):
    A(f"s_cmp_ge_u32 s2, {grid}")
    A(f"s_cbranch_scc1 {name}_end")
    for d, off in loads:
        A(f"s_load_dwordx2 {s(d,2)}, s[0:1], {off}")
    A("v_lshrrev_b32 v2, 6, v0")
    A("v_and_b32 v1, 63, v0")
    A("s_nop 0")
    A("v_readfirstlane_b32 s32, v2")
    A("s_waitcnt lgkmcnt(0)")

def gelu(A, regs, tmps):
    c0 = -2.0 * math.log2(math.e) * math.sqrt(2.0 / math.pi)
    c1 = c0 * 0.044715
    A(f"s_mov_b32 s60, {f32hex(c1)}")
    A(f"s_mov_b32 s61, {f32hex(c0)}")
    for z, t in zip(regs, tmps): A(f"v_mul_f32 {v(t)}, {v(z)}, {v(z)}")
    A(f"v_mov_b32 {v(tmps[-1]+1)}, s61")
    for z, t in zip(regs, tmps): A(f"v_fma_f32 {v(t)}, {v(t)}, s60, {v(tmps[-1]+1)}")
    for z, t in zip(regs, tmps): A(f"v_mul_f32 {v(t)}, {v(t)}, {v(z)}")
    for z, t in zip(regs, tmps): A(f"v_exp_f32 {v(t)}, {v(t)}")
    A("s_nop 0")
    for z, t in zip(regs, tmps): A(f"v_add_f32 {v(t)}, 1.0, {v(t)}")
    for z, t in zip(regs, tmps): A(f"v_rcp_f32 {v(t)}, {v(t)}")
    A("s_nop 0")
    for z, t in zip(regs, tmps): A(f"v_mul_f32 {v(z)}, {v(z)}, {v(t)}")

def unpack(A, dst, src, n):
    for i in range(n):
        A(f"v_lshlrev_b32 {v(dst+2*i)}, 16, {v(src+i)}")
        A(f"v_and_b32 {v(dst+2*i+1)}, 0xffff0000, {v(src+i)}")

def col_loads(Q, dst, vcol, srd_, base_off, NB, tag):
    for nb in range(NB):
        Q.issue(f"buffer_load_dwordx4 {v(dst+4*nb,4)}, {v(vcol)}, {s(srd_,4)}, 0 offen offset:{base_off + 64*nb}", tag)

def gen_t1(name="t1_kernel"):
    A = Asm()
    common_start(A, name, 256, [(4, KA_WS), (6, KA_WO), (8, KA_X)])
    sRg, sCb, sRb = 35, 36, 37
    wg_map64(A, sRg, sCb)
    A(f"s_lshl_b32 {s(sRb)}, {s(sRg)}, 2")
    A(f"s_add_u32 {s(sRb)}, {s(sRb)}, s32")
    sWs, sAs, sXs, sMs, sX2, sXG, sST = 12, 16, 20, 24, 28, 40, 44
    srd(A, sWs, 6, 4096*1024)
    srd(A, sAs, 4, 2048*8192, WS_O)
    srd(A, sXs, 8, 2048*1024)
    srd(A, sMs, 4, 3072*4, WS_MOD)
    srd(A, sX2, 4, 2048*1024, WS_X2)
    srd(A, sXG, 4, 2048*1024, WS_XG)
    srd(A, sST, 4, 2048*256, WS_ST1)
    G = Gemm(A, name, NB=4, RB=1, nks=128, CK=8, RD=4, pitch=1024)
    sCol = 38
    A(f"s_lshl_b32 {s(sCol)}, {s(sCb)}, 7")
    regs = dict(vWD=3, vTR=4, tmp=12, sM0=48, sSo=49, sT=50)
    G.setup(1, 32, sCol, regs)
    ACC = 20
    vAct, vCol, vXo, vFr = 18, 19, 36, 37
    A(f"s_lshl_b32 s51, {s(sRb)}, 17")
    A(f"v_lshlrev_b32 {v(vAct)}, 4, v1")
    A(f"v_add_u32 {v(vAct)}, s51, {v(vAct)}")
    A(f"v_lshrrev_b32 v12, 4, v1")
    A(f"v_and_b32 v13, 15, v1")
    A(f"s_lshl_b32 s51, {s(sCb)}, 8")
    A(f"v_lshlrev_b32 {v(vCol)}, 4, v12")
    A(f"v_add_u32 {v(vCol)}, s51, {v(vCol)}")
    A(f"s_lshl_b32 s51, {s(sRb)}, 14")
    A(f"v_lshlrev_b32 {v(vXo)}, 10, v13")
    A(f"v_add_u32 {v(vXo)}, s51, {v(vXo)}")
    A(f"v_lshrrev_b32 v14, 1, {v(vCol)}")
    A(f"v_add_u32 {v(vXo)}, {v(vXo)}, v14")
    for i in range(16): A(f"v_mov_b32 {v(ACC+i)}, 0")
    SJ = 200
    A("s_cmp_lt_u32 s2, 17")
    A("s_cselect_b32 s56, 1, 0")
    A("s_cmp_eq_u32 s32, 0")
    A("s_cselect_b32 s56, s56, 0")
    A("s_cmp_eq_u32 s56, 0")
    A(f"s_cbranch_scc1 {name}_sj0")
    A("s_cmp_eq_u32 s2, 16")
    A(f"s_cbranch_scc1 {name}_sjc")
    A("s_lshl_b32 s57, s2, 7")
    A(f"v_lshl_add_u32 {v(SJ+16)}, v12, 4, s57")
    A(f"v_add_u32 {v(SJ+17)}, 64, {v(SJ+16)}")
    A(f"s_branch {name}_sjl")
    A.label(f"{name}_sjc")
    A(f"v_lshlrev_b32 {v(SJ+16)}, 5, v1")
    A(f"v_add_u32 {v(SJ+17)}, 16, {v(SJ+16)}")
    A.label(f"{name}_sjl")
    A(f"s_mov_b32 s57, {3*2048}")
    A(f"s_mov_b32 s58, {4*2048}")
    A(f"buffer_load_dwordx4 {v(SJ,4)}, {v(SJ+16)}, {s(sMs,4)}, s57 offen")
    A(f"buffer_load_dwordx4 {v(SJ+4,4)}, {v(SJ+17)}, {s(sMs,4)}, s57 offen")
    A(f"buffer_load_dwordx4 {v(SJ+8,4)}, {v(SJ+16)}, {s(sMs,4)}, s58 offen")
    A(f"buffer_load_dwordx4 {v(SJ+12,4)}, {v(SJ+17)}, {s(sMs,4)}, s58 offen")
    A.label(f"{name}_sj0")
    Q = VmQ(A)
    def side():
        n = len(Q.q)
        A("s_cmp_eq_u32 s56, 0")
        A(f"s_cbranch_scc1 {name}_sj1")
        A(f"s_waitcnt vmcnt({n})")
        A("s_cmp_eq_u32 s2, 16")
        A(f"s_cbranch_scc1 {name}_sjc2")
        A("v_cmp_eq_u32 vcc, 1, v13")
        A("v_cmp_eq_u32 s[62:63], 2, v13")
        A("v_cmp_eq_u32 s[64:65], 0, v13")
        A("s_nop 1")
        for i in range(8):
            A(f"v_cndmask_b32 {v(SJ+18+i)}, 0, 1.0, vcc")
        for i in range(8):
            A(f"v_cndmask_b32 {v(SJ+18+i)}, {v(SJ+18+i)}, {v(SJ+8+i)}, s[62:63]")
        for i in range(8):
            A(f"v_cndmask_b32 {v(SJ+18+i)}, {v(SJ+18+i)}, {v(SJ+i)}, s[64:65]")
        for i in range(4):
            A(f"v_cvt_pk_bf16_f32 {v(SJ+i)}, {v(SJ+18+2*i)}, {v(SJ+18+2*i+1)}")
        srd(A, 68, 4, 16384, WS_EB)
        A("s_lshl_b32 s57, s2, 10")
        A(f"v_lshlrev_b32 {v(SJ+16)}, 4, v1")
        A(f"buffer_store_dwordx4 {v(SJ,4)}, {v(SJ+16)}, s[68:71], s57 offen")
        A(f"s_branch {name}_sj1")
        A.label(f"{name}_sjc2")
        C = SJ + 18
        for i in range(5): A(f"v_mov_b32 {v(C+i)}, 0")
        for i in range(8):
            sv, gv = SJ + i, SJ + 8 + i
            A(f"v_add_f32 {v(C)}, {v(C)}, {v(gv)}")
            A(f"v_add_f32 {v(C+1)}, {v(C+1)}, {v(sv)}")
            A(f"v_fmac_f32 {v(C+2)}, {v(gv)}, {v(gv)}")
            A(f"v_fmac_f32 {v(C+3)}, {v(gv)}, {v(sv)}")
            A(f"v_fmac_f32 {v(C+4)}, {v(sv)}, {v(sv)}")
        allreduce16(A, [C+i for i in range(5)])
        allreduce_rows(A, [C+i for i in range(5)], [C+8+i for i in range(5)])
        srd(A, 68, 4, 64, WS_CONST)
        A(f"v_lshlrev_b32 {v(SJ+16)}, 6, v1")
        A(f"buffer_store_dwordx4 {v(C,4)}, {v(SJ+16)}, s[68:71], 0 offen")
        A(f"buffer_store_dword {v(C+4)}, {v(SJ+16)}, s[68:71], 0 offen offset:16")
        A.label(f"{name}_sj1")
    XT, GA, G2, SB = 40, 48, 64, 80
    so = [None]
    def act_load(ks, rb):
        if (ks >> 2) != so[0]:
            so[0] = ks >> 2
            A(f"s_mov_b32 s52, {(ks >> 2) * 4096}")
        Q.issue(f"buffer_load_dwordx4 {a(G.AF(ks, rb),4)}, {v(vAct)}, {s(sAs,4)}, s52 offen offset:{(ks & 3)*1024}", f"a{ks // G.CK}")
    def pre():
        for nb in range(4):
            Q.issue(f"buffer_load_dwordx2 {v(XT+2*nb,2)}, {v(vXo)}, {s(sXs,4)}, 0 offen offset:{32*nb}", "epi")
        A(f"v_add_u32 v16, {2*2048}, {v(vCol)}")
        col_loads(Q, GA, 16, sMs, 0, 4, "epi")
        A(f"v_add_u32 v14, {3*2048}, {v(vCol)}")
        col_loads(Q, SB, 14, sMs, 0, 4, "epi")
        A(f"v_add_u32 v15, {4*2048}, {v(vCol)}")
        col_loads(Q, G2, 15, sMs, 0, 4, "epi")
    G.run(Q, sWs, act_load, lambda rb, nb: ACC + 4*nb, late=(104, pre), mid=side)
    Q.wait("epi")
    X = 96
    unpack(A, X, XT, 8)
    A.nop(4)
    for i in range(16): A(f"v_fma_f32 {v(X+i)}, {v(GA+i)}, {v(ACC+i)}, {v(X+i)}")
    PK = 112
    for i in range(8): A(f"v_cvt_pk_bf16_f32 {v(PK+i)}, {v(X+2*i)}, {v(X+2*i+1)}")
    A(f"s_lshl_b32 s51, {s(sRb)}, 14")
    A(f"s_lshl_b32 s53, {s(sCb)}, 11")
    A("s_add_u32 s51, s51, s53")
    A(f"v_lshlrev_b32 {v(vFr)}, 4, v1")
    for m in range(2):
        A(f"buffer_store_dwordx4 {v(PK+4*m,4)}, {v(vFr)}, {s(sX2,4)}, s51 offen offset:{1024*m}")
    unpack(A, X, PK, 8)
    XG = 120
    for i in range(16): A(f"v_mul_f32 {v(XG+i)}, {v(X+i)}, {v(G2+i)}")
    PG = 136
    for i in range(8): A(f"v_cvt_pk_bf16_f32 {v(PG+i)}, {v(XG+2*i)}, {v(XG+2*i+1)}")
    for m in range(2):
        A(f"buffer_store_dwordx4 {v(PG+4*m,4)}, {v(vFr)}, {s(sXG,4)}, s51 offen offset:{1024*m}")
    P = 144
    for i in range(6): A(f"v_mov_b32 {v(P+i)}, 0")
    for i in range(16):
        A(f"v_add_f32 {v(P)}, {v(P)}, {v(X+i)}")
        A(f"v_fmac_f32 {v(P+1)}, {v(X+i)}, {v(X+i)}")
        A(f"v_add_f32 {v(P+2)}, {v(P+2)}, {v(XG+i)}")
        A(f"v_fmac_f32 {v(P+3)}, {v(XG+i)}, {v(XG+i)}")
        A(f"v_fmac_f32 {v(P+4)}, {v(XG+i)}, {v(G2+i)}")
        A(f"v_fmac_f32 {v(P+5)}, {v(XG+i)}, {v(SB+i)}")
    allreduce_rows(A, [P+i for i in range(6)], [P+8+i for i in range(6)])
    A(f"v_mov_b32 {v(P+6)}, 0")
    A(f"v_mov_b32 {v(P+7)}, 0")
    A(f"s_lshl_b32 s51, {s(sRb)}, 12")
    A(f"s_lshl_b32 s53, {s(sCb)}, 5")
    A("s_add_u32 s51, s51, s53")
    A("v_lshlrev_b32 v14, 8, v13")
    A("v_cmp_gt_u32 vcc, 16, v1")
    A("s_and_saveexec_b64 s[54:55], vcc")
    A(f"buffer_store_dwordx4 {v(P,4)}, v14, {s(sST,4)}, s51 offen")
    A(f"buffer_store_dwordx4 {v(P+4,4)}, v14, {s(sST,4)}, s51 offen offset:16")
    A.label(f"{name}_end")
    A("s_endpgm")
    return dict(name=name, asm=A, grid=256, block=256, lds=G.lds_bytes, nv=256 + G.agprs, acc=256, ns=80)


def tile_prologue(A, name, sRg, sCb, sRb, wptr):
    common_start(A, name, 256, [(4, KA_WS), (6, wptr)])
    wg_map64(A, sRg, sCb)
    A(f"s_lshl_b32 {s(sRb)}, {s(sRg)}, 2")
    A(f"s_add_u32 {s(sRb)}, {s(sRb)}, s32")

def lane_parts(A, vG, vRow):
    A(f"v_lshrrev_b32 {v(vG)}, 4, v1")
    A(f"v_and_b32 {v(vRow)}, 15, v1")

def frag_off(A, dst_s, sRb, nks_log2_mul, sCb, cb_shift, tmp_s):
    A(f"s_mul_i32 {s(dst_s)}, {s(sRb)}, {nks_log2_mul*1024}")
    A(f"s_lshl_b32 {s(tmp_s)}, {s(sCb)}, {cb_shift}")
    A(f"s_add_u32 {s(dst_s)}, {s(dst_s)}, {s(tmp_s)}")

def gen_t2(name="t2_kernel"):
    A = Asm()
    sRg, sCb, sRb = 35, 36, 37
    tile_prologue(A, name, sRg, sCb, sRb, KA_W1)
    sWs, sAs, sEs, sST, sH = 12, 16, 20, 24, 28
    srd(A, sWs, 6, 512*1024)
    srd(A, sAs, 4, 2048*1024, WS_XG)
    srd(A, sEs, 4, 16384, WS_EB)
    srd(A, sST, 4, 2048*256, WS_ST1)
    srd(A, sH, 4, 2048*1024, WS_H1)
    A(f"s_add_u32 s40, s4, {WS_CONST}")
    A("s_addc_u32 s41, s5, 0")
    A("s_load_dwordx8 s[64:71], s[40:41], 0")
    G = Gemm(A, name, NB=4, RB=1, nks=16, CK=4, RD=4, pitch=1024)
    sCol = 38
    A(f"s_lshl_b32 {s(sCol)}, {s(sCb)}, 7")
    regs = dict(vWD=3, vTR=4, tmp=12, sM0=48, sSo=49, sT=50)
    G.setup(1, 32, sCol, regs)
    vTE = 8
    A(f"v_xor_b32 v14, s32, v16")
    A(f"v_lshl_add_u32 {v(vTE)}, v14, 5, v17")
    ACC, VE = 20, 36
    vAct, vSt, vFr = 18, 19, 9
    lane_parts(A, 12, 13)
    A(f"s_lshl_b32 s51, {s(sRb)}, 14")
    A(f"v_lshlrev_b32 {v(vFr)}, 4, v1")
    A(f"v_add_u32 {v(vAct)}, s51, {v(vFr)}")
    A(f"s_lshl_b32 s51, {s(sRb)}, 12")
    A(f"v_lshlrev_b32 {v(vSt)}, 8, v13")
    A(f"v_lshl_add_u32 {v(vSt)}, v12, 6, {v(vSt)}")
    A(f"v_add_u32 {v(vSt)}, s51, {v(vSt)}")
    for i in range(20): A(f"v_mov_b32 {v(ACC+i)}, 0")
    Q = VmQ(A)
    EF = lambda ks: G.agprs + 4*ks
    WE = lambda buf: G.agprs + 64 + 4*buf
    ST = 40
    so = [None]
    def setso(ks):
        if (ks >> 2) != so[0]:
            so[0] = ks >> 2
            A(f"s_mov_b32 s52, {(ks >> 2) * 4096}")
    def act_load(ks, rb):
        setso(ks)
        Q.issue(f"buffer_load_dwordx4 {a(G.AF(ks, rb),4)}, {v(vAct)}, {s(sAs,4)}, s52 offen offset:{(ks & 3)*1024}", f"a{ks // G.CK}")
        Q.issue(f"buffer_load_dwordx4 {a(EF(ks),4)}, {v(vFr)}, {s(sEs,4)}, s52 offen offset:{(ks & 3)*1024}", f"a{ks // G.CK}")
    def pre():
        for i in range(4):
            Q.issue(f"buffer_load_dwordx4 {v(ST+4*i,4)}, {v(vSt)}, {s(sST,4)}, 0 offen offset:{16*i}", "epi")
    def extra_ds(ks):
        return [f"ds_read_b64_tr_b16 {a(WE(ks & 1) + 2*j, 2)}, {v(vTE)} offset:{G.lds_off(ks) + j*16*G.rowb}" for j in range(2)]
    def extra_mf(ks):
        return [f"v_mfma_f32_16x16x32_bf16 {v(VE,4)}, {a(WE(ks & 1),4)}, {a(EF(ks),4)}, {v(VE,4)}"]
    G.run(Q, sWs, act_load, lambda rb, nb: ACC + 4*nb, extra_mfma=extra_mf, extra_ds=extra_ds, pre_issue=pre)
    LV = G.lds_bytes
    A.nop(8)
    A("v_lshlrev_b32 v14, 8, v13")
    A("v_lshl_add_u32 v14, v12, 4, v14")
    A("s_lshl_b32 s51, s32, 6")
    A(f"s_add_u32 s51, s51, {LV}")
    A("v_add_u32 v14, s51, v14")
    A("v_cmp_gt_u32 vcc, 3, v13")
    A("s_and_saveexec_b64 s[54:55], vcc")
    A(f"ds_write_b128 v14, {v(VE,4)}")
    A("s_mov_b64 exec, s[54:55]")
    Q.wait("epi")
    P = 56
    for i in range(6):
        A(f"v_add_f32 {v(P+i)}, {v(ST+i)}, {v(ST+8+i)}")
    A("s_waitcnt lgkmcnt(0)")
    A("s_barrier")
    V1, V2, V3 = 72, 88, 104
    A("v_lshlrev_b32 v14, 4, v12")
    A(f"v_add_u32 v14, {LV}, v14")
    for j, base in enumerate((V1, V2, V3)):
        for nb in range(4):
            A(f"ds_read_b128 {v(base+4*nb,4)}, v14 offset:{256*j + 64*nb}")
    allreduce_rows(A, [P+i for i in range(6)], [P+8+i for i in range(6)])
    inv = f32hex(1/512)
    mu, r1, m2, e2, t0, t1, r2, R = 120, 121, 122, 123, 124, 125, 126, 127
    cB, cC = 128, 129
    A(f"v_mul_f32 {v(mu)}, {inv}, {v(P)}")
    A(f"v_mul_f32 {v(t0)}, {inv}, {v(P+1)}")
    A(f"v_fma_f32 {v(t0)}, -{v(mu)}, {v(mu)}, {v(t0)}")
    A(f"v_max_f32 {v(t0)}, 0, {v(t0)}")
    A(f"v_add_f32 {v(t0)}, {f32hex(1e-5)}, {v(t0)}")
    A(f"v_rsq_f32 {v(r1)}, {v(t0)}")
    A(f"v_fma_f32 {v(t0)}, -{v(mu)}, s64, {v(P+2)}")
    A(f"v_fma_f32 {v(t0)}, {v(t0)}, {v(r1)}, s65")
    A(f"v_mul_f32 {v(m2)}, {inv}, {v(t0)}")
    A(f"v_mul_f32 {v(t0)}, s66, {v(mu)}")
    A(f"v_fma_f32 {v(t0)}, -2.0, {v(P+4)}, {v(t0)}")
    A(f"v_fma_f32 {v(t0)}, {v(t0)}, {v(mu)}, {v(P+3)}")
    A(f"v_mul_f32 {v(t0)}, {v(t0)}, {v(r1)}")
    A(f"v_fma_f32 {v(t1)}, -{v(mu)}, s67, {v(P+5)}")
    A(f"v_fma_f32 {v(t0)}, 2.0, {v(t1)}, {v(t0)}")
    A(f"v_fma_f32 {v(t0)}, {v(t0)}, {v(r1)}, s68")
    A(f"v_mul_f32 {v(e2)}, {inv}, {v(t0)}")
    A(f"v_fma_f32 {v(t0)}, -{v(m2)}, {v(m2)}, {v(e2)}")
    A(f"v_max_f32 {v(t0)}, 0, {v(t0)}")
    A(f"v_add_f32 {v(t0)}, {f32hex(1e-5)}, {v(t0)}")
    A(f"v_rsq_f32 {v(r2)}, {v(t0)}")
    A("s_nop 0")
    A(f"v_mul_f32 {v(R)}, {v(r1)}, {v(r2)}")
    A(f"v_mul_f32 {v(cB)}, {v(m2)}, {v(r2)}")
    A(f"v_mul_f32 {v(cC)}, {v(mu)}, {v(R)}")
    A("s_waitcnt lgkmcnt(0)")
    for i in range(16):
        A(f"v_mul_f32 {v(ACC+i)}, {v(ACC+i)}, {v(R)}")
        A(f"v_fmac_f32 {v(ACC+i)}, {v(V1+i)}, {v(r2)}")
        A(f"v_fma_f32 {v(ACC+i)}, -{v(V2+i)}, {v(cB)}, {v(ACC+i)}")
        A(f"v_fma_f32 {v(ACC+i)}, -{v(V3+i)}, {v(cC)}, {v(ACC+i)}")
    gelu(A, [ACC+i for i in range(16)], [132+i for i in range(16)])
    PK = 152
    for i in range(8): A(f"v_cvt_pk_bf16_f32 {v(PK+i)}, {v(ACC+2*i)}, {v(ACC+2*i+1)}")
    frag_off(A, 51, sRb, 16, sCb, 11, 53)
    for m in range(2):
        A(f"buffer_store_dwordx4 {v(PK+4*m,4)}, {v(vFr)}, {s(sH,4)}, s51 offen offset:{1024*m}")
    A.label(f"{name}_end")
    A("s_endpgm")
    return dict(name=name, asm=A, grid=256, block=256, lds=G.lds_bytes + 1024, nv=256 + G.agprs + 72, acc=256, ns=80)

def row_stats(A, s1, s2, mu, r, tmp):
    inv = f32hex(1/512)
    A(f"v_mul_f32 {v(mu)}, {inv}, {v(s1)}")
    A(f"v_mul_f32 {v(tmp)}, {inv}, {v(s2)}")
    A(f"v_fma_f32 {v(tmp)}, -{v(mu)}, {v(mu)}, {v(tmp)}")
    A(f"v_max_f32 {v(tmp)}, 0, {v(tmp)}")
    A(f"v_add_f32 {v(tmp)}, {f32hex(1e-5)}, {v(tmp)}")
    A(f"v_rsq_f32 {v(r)}, {v(tmp)}")
    A("s_nop 0")

def gen_t3(name="t3_kernel"):
    A = Asm()
    sRg, sCb, sRb = 35, 36, 37
    tile_prologue(A, name, sRg, sCb, sRb, KA_W2)
    sWs, sAs, sX2, sST, sMs, sX1, sS2 = 12, 16, 20, 24, 28, 40, 44
    srd(A, sWs, 6, 512*1024)
    srd(A, sAs, 4, 2048*1024, WS_H1)
    srd(A, sX2, 4, 2048*1024, WS_X2)
    srd(A, sST, 4, 2048*256, WS_ST1)
    srd(A, sMs, 4, 3072*4, WS_MOD)
    srd(A, sX1, 4, 2048*1024, WS_X1)
    srd(A, sS2, 4, 2048*64, WS_ST2)
    G = Gemm(A, name, NB=4, RB=1, nks=16, CK=4, RD=4, pitch=1024)
    sCol = 38
    A(f"s_lshl_b32 {s(sCol)}, {s(sCb)}, 7")
    regs = dict(vWD=3, vTR=4, tmp=12, sM0=48, sSo=49, sT=50)
    G.setup(1, 32, sCol, regs)
    ACC = 20
    vSh, vSt, vFr, vCol = 36, 19, 9, 18
    lane_parts(A, 12, 13)
    A(f"v_lshlrev_b32 {v(vFr)}, 4, v1")
    A(f"s_lshl_b32 s51, {s(sRb)}, 4")
    A("v_add_u32 v14, s51, v13")
    for i, dl in enumerate((-1, 1, -2, 2)):
        A(f"v_add_u32 v15, {dl}, v14")
        A("v_lshrrev_b32 v16, 4, v15")
        A("v_lshlrev_b32 v16, 14, v16")
        A("v_and_b32 v17, 15, v15")
        A("v_lshl_add_u32 v17, v12, 4, v17")
        A(f"v_lshl_add_u32 {v(vSh+i)}, v17, 4, v16")
        A("v_cmp_gt_u32 vcc, 2048, v15")
        A("v_mov_b32 v17, 0x7f000000")
        A("s_nop 0")
        A(f"v_cndmask_b32 {v(vSh+i)}, v17, {v(vSh+i)}, vcc")
    A(f"s_lshl_b32 s51, {s(sRb)}, 12")
    A(f"v_lshlrev_b32 {v(vSt)}, 8, v13")
    A(f"v_lshl_add_u32 {v(vSt)}, v12, 6, {v(vSt)}")
    A(f"v_add_u32 {v(vSt)}, s51, {v(vSt)}")
    A(f"s_lshl_b32 s51, {s(sCb)}, 8")
    A(f"v_lshlrev_b32 {v(vCol)}, 4, v12")
    A(f"v_add_u32 {v(vCol)}, s51, {v(vCol)}")
    for i in range(16): A(f"v_mov_b32 {v(ACC+i)}, 0")
    Q = VmQ(A)
    so = [None]
    def act_load(ks, rb):
        if (ks >> 2) != so[0]:
            so[0] = ks >> 2
            A(f"s_mov_b32 s52, {(ks >> 2) * 4096}")
        Q.issue(f"buffer_load_dwordx4 {a(G.AF(ks, rb),4)}, {v(vSh + (ks >> 2))}, {s(sAs,4)}, s52 offen offset:{(ks & 3)*1024}", f"a{ks // G.CK}")
    XT, STr, G2, SB = 40, 48, 56, 72
    frag_off(A, 56, sRb, 16, sCb, 11, 53)
    def pre():
        for m in range(2):
            Q.issue(f"buffer_load_dwordx4 {v(XT+4*m,4)}, {v(vFr)}, {s(sX2,4)}, s56 offen offset:{1024*m}", "epi")
        for i in range(2):
            Q.issue(f"buffer_load_dwordx2 {v(STr+2*i,2)}, {v(vSt)}, {s(sST,4)}, 0 offen offset:{32*i}", "epi")
        A(f"v_add_u32 v14, {3*2048}, {v(vCol)}")
        col_loads(Q, SB, 14, sMs, 0, 4, "epi")
        A(f"v_add_u32 v15, {4*2048}, {v(vCol)}")
        col_loads(Q, G2, 15, sMs, 0, 4, "epi")
    G.run(Q, sWs, act_load, lambda rb, nb: ACC + 4*nb, pre_issue=pre)
    Q.wait("epi")
    A(f"v_add_f32 {v(STr)}, {v(STr)}, {v(STr+2)}")
    A(f"v_add_f32 {v(STr+1)}, {v(STr+1)}, {v(STr+3)}")
    allreduce_rows(A, [STr, STr+1], [STr+4, STr+5])
    mu, r1 = 90, 91
    row_stats(A, STr, STr+1, mu, r1, 92)
    X = 96
    unpack(A, X, XT, 8)
    for i in range(16):
        A(f"v_sub_f32 {v(X+i)}, {v(X+i)}, {v(mu)}")
        A(f"v_mul_f32 {v(X+i)}, {v(X+i)}, {v(r1)}")
        A(f"v_fma_f32 {v(X+i)}, {v(X+i)}, {v(G2+i)}, {v(SB+i)}")
        A(f"v_add_f32 {v(X+i)}, {v(X+i)}, {v(ACC+i)}")
    PK = 112
    for i in range(8): A(f"v_cvt_pk_bf16_f32 {v(PK+i)}, {v(X+2*i)}, {v(X+2*i+1)}")
    for m in range(2):
        A(f"buffer_store_dwordx4 {v(PK+4*m,4)}, {v(vFr)}, {s(sX1,4)}, s56 offen offset:{1024*m}")
    unpack(A, X, PK, 8)
    P = 120
    A(f"v_mov_b32 {v(P)}, 0")
    A(f"v_mov_b32 {v(P+1)}, 0")
    for i in range(16):
        A(f"v_add_f32 {v(P)}, {v(P)}, {v(X+i)}")
        A(f"v_fmac_f32 {v(P+1)}, {v(X+i)}, {v(X+i)}")
    allreduce_rows(A, [P, P+1], [P+2, P+3])
    A(f"s_lshl_b32 s51, {s(sRb)}, 10")
    A(f"s_lshl_b32 s53, {s(sCb)}, 3")
    A("s_add_u32 s51, s51, s53")
    A("v_lshlrev_b32 v14, 6, v13")
    A("v_cmp_gt_u32 vcc, 16, v1")
    A("s_and_saveexec_b64 s[54:55], vcc")
    A(f"buffer_store_dwordx2 {v(P,2)}, v14, {s(sS2,4)}, s51 offen")
    A.label(f"{name}_end")
    A("s_endpgm")
    return dict(name=name, asm=A, grid=256, block=256, lds=G.lds_bytes, nv=256 + G.agprs, acc=256, ns=80)

def gen_t4(name="t4_kernel"):
    A = Asm()
    common_start(A, name, 224, [(4, KA_WS), (6, KA_W3)])
    sRg, sCb, sRb = 35, 36, 37
    A("s_and_b32 s33, s2, 7")
    A("s_lshl_b32 s33, s33, 1")
    A("s_lshr_b32 s34, s2, 3")
    A("s_and_b32 s34, s34, 1")
    A(f"s_add_u32 {s(sRg)}, s33, s34")
    A(f"s_lshr_b32 {s(sCb)}, s2, 4")
    A(f"s_lshl_b32 {s(sRb)}, {s(sRg)}, 3")
    A("s_lshl_b32 s33, s32, 1")
    A(f"s_add_u32 {s(sRb)}, {s(sRb)}, s33")
    sWs, sAs, sS2, sCS, sU = 12, 16, 20, 24, 28
    srd(A, sWs, 6, 512*3584)
    srd(A, sAs, 4, 2048*1024, WS_X1)
    srd(A, sS2, 4, 2048*64, WS_ST2)
    srd(A, sCS, 4, 1792*4, WS_CS3)
    srd(A, sU, 4, 2048*3584, WS_U)
    G = Gemm(A, name, NB=8, RB=2, nks=16, CK=4, RD=4, pitch=3584, PD=3)
    sCol = 38
    A(f"s_lshl_b32 {s(sCol)}, {s(sCb)}, 8")
    regs = dict(vWD=3, vTR=20, tmp=12, sM0=48, sSo=49, sT=50)
    G.setup(1, 32, sCol, regs)
    ACC = 64
    acc = lambda rb, nb: ACC + (rb*8 + nb)*4
    vAct, vSt, vFr, vCol = 5, 7, 9, 10
    lane_parts(A, 12, 13)
    A(f"v_lshlrev_b32 {v(vFr)}, 4, v1")
    A(f"s_lshl_b32 s51, {s(sRb)}, 14")
    A(f"v_add_u32 {v(vAct)}, s51, {v(vFr)}")
    A(f"v_add_u32 {v(vAct+1)}, 16384, {v(vAct)}")
    A(f"s_lshl_b32 s51, {s(sRb)}, 10")
    A(f"v_lshlrev_b32 {v(vSt)}, 6, v13")
    A(f"v_lshl_add_u32 {v(vSt)}, v12, 4, {v(vSt)}")
    A(f"v_add_u32 {v(vSt)}, s51, {v(vSt)}")
    A(f"v_add_u32 {v(vSt+1)}, 1024, {v(vSt)}")
    A(f"s_lshl_b32 s51, {s(sCb)}, 9")
    A(f"v_lshlrev_b32 {v(vCol)}, 4, v12")
    A(f"v_add_u32 {v(vCol)}, s51, {v(vCol)}")
    for i in range(64): A(f"v_mov_b32 {v(ACC+i)}, 0")
    Q = VmQ(A)
    so = [None]
    def act_load(ks, rb):
        if (ks >> 2) != so[0]:
            so[0] = ks >> 2
            A(f"s_mov_b32 s52, {(ks >> 2) * 4096}")
        Q.issue(f"buffer_load_dwordx4 {a(G.AF(ks, rb),4)}, {v(vAct + rb)}, {s(sAs,4)}, s52 offen offset:{(ks & 3)*1024}", f"a{ks // G.CK}")
    STr, CS = 40, 128
    def pre():
        for rb in range(2):
            Q.issue(f"buffer_load_dwordx4 {v(STr+4*rb,4)}, {v(vSt+rb)}, {s(sS2,4)}, 0 offen", "epi")
        col_loads(Q, CS, vCol, sCS, 0, 8, "epi")
    G.run(Q, sWs, act_load, acc, pre_issue=pre)
    Q.wait("epi")
    Sx = [48, 49, 50, 51]
    for rb in range(2):
        A(f"v_add_f32 {v(Sx[2*rb])}, {v(STr+4*rb)}, {v(STr+4*rb+2)}")
        A(f"v_add_f32 {v(Sx[2*rb+1])}, {v(STr+4*rb+1)}, {v(STr+4*rb+3)}")
    allreduce_rows(A, Sx, [52, 53, 54, 55])
    frag = 56
    for rb in range(2):
        mu, r = 56 + 2*rb, 57 + 2*rb
        row_stats(A, Sx[2*rb], Sx[2*rb+1], mu, r, 60)
        A(f"v_mul_f32 {v(mu)}, {v(mu)}, {v(r)}")
    A(f"s_mul_i32 s51, {s(sRb)}, {56*1024}")
    A(f"s_lshl_b32 s53, {s(sCb)}, 12")
    A("s_add_u32 s51, s51, s53")
    for rb in range(2):
        mu, r = 56 + 2*rb, 57 + 2*rb
        for half in range(2):
            rr = [acc(rb, 0) + 16*half + i for i in range(16)]
            for i, z in enumerate(rr):
                A(f"v_mul_f32 {v(z)}, {v(z)}, {v(r)}")
                A(f"v_fma_f32 {v(z)}, -{v(mu)}, {v(CS + 16*half + i)}, {v(z)}")
            gelu(A, rr, [160+i for i in range(16)])
            PK = 180 + 8*((2*rb + half) & 1)
            for i in range(8): A(f"v_cvt_pk_bf16_f32 {v(PK+i)}, {v(rr[2*i])}, {v(rr[2*i+1])}")
            for m in range(2):
                A(f"buffer_store_dwordx4 {v(PK+4*m,4)}, {v(vFr)}, {s(sU,4)}, s51 offen offset:{1024*(2*half+m)}")
        if rb == 0: A(f"s_add_u32 s51, s51, {56*1024}")
    A.label(f"{name}_end")
    A("s_endpgm")
    return dict(name=name, asm=A, grid=224, block=256, lds=G.lds_bytes, nv=256 + G.agprs, acc=256, ns=80)

def gen_t5(name="t5_kernel"):
    A = Asm()
    common_start(A, name, 256, [(4, KA_WS), (6, KA_W4), (8, KA_OUT)])
    sRg, sCb, sRb = 35, 36, 37
    wg_map64(A, sRg, sCb)
    A(f"s_lshl_b32 {s(sRb)}, {s(sRg)}, 2")
    A(f"s_add_u32 {s(sRb)}, {s(sRb)}, s32")
    sWs, sAs, sX2, sX1, sMs, sOut = 12, 16, 20, 24, 28, 40
    srd(A, sWs, 6, 1792*1024)
    srd(A, sAs, 4, 2048*3584, WS_U)
    srd(A, sX2, 4, 2048*1024, WS_X2)
    srd(A, sX1, 4, 2048*1024, WS_X1)
    srd(A, sMs, 4, 3072*4, WS_MOD)
    srd(A, sOut, 8, 2048*1024)
    G = Gemm(A, name, NB=4, RB=1, nks=56, CK=8, RD=4, pitch=1024)
    sCol = 38
    A(f"s_lshl_b32 {s(sCol)}, {s(sCb)}, 7")
    regs = dict(vWD=3, vTR=4, tmp=12, sM0=48, sSo=49, sT=50)
    G.setup(1, 32, sCol, regs)
    ACC = 20
    vAct, vCol, vFr, vOut = 18, 19, 36, 37
    lane_parts(A, 12, 13)
    A(f"v_lshlrev_b32 {v(vFr)}, 4, v1")
    A(f"s_mul_i32 s51, {s(sRb)}, {56*1024}")
    A(f"v_add_u32 {v(vAct)}, s51, {v(vFr)}")
    A(f"s_lshl_b32 s51, {s(sCb)}, 8")
    A(f"v_lshlrev_b32 {v(vCol)}, 4, v12")
    A(f"v_add_u32 {v(vCol)}, s51, {v(vCol)}")
    A("v_and_b32 v14, 1, v12")
    A("v_lshlrev_b32 v14, 1, v14")
    A("v_lshrrev_b32 v15, 1, v12")
    A("v_or_b32 v14, v14, v15")
    A("v_lshlrev_b32 v14, 4, v14")
    A("v_lshl_add_u32 v14, v13, 10, v14")
    A(f"s_lshl_b32 s51, {s(sRb)}, 14")
    A(f"s_add_u32 s51, s51, {s(sCol)}")
    A(f"v_add_u32 {v(vOut)}, s51, v14")
    for i in range(16): A(f"v_mov_b32 {v(ACC+i)}, 0")
    Q = VmQ(A)
    so = [None]
    def act_load(ks, rb):
        if (ks >> 2) != so[0]:
            so[0] = ks >> 2
            A(f"s_mov_b32 s52, {(ks >> 2) * 4096}")
        Q.issue(f"buffer_load_dwordx4 {a(G.AF(ks, rb),4)}, {v(vAct)}, {s(sAs,4)}, s52 offen offset:{(ks & 3)*1024}", f"a{ks // G.CK}")
    X2T, X1T, GB = 40, 48, 56
    frag_off(A, 56, sRb, 16, sCb, 11, 53)
    def pre():
        for m in range(2):
            Q.issue(f"buffer_load_dwordx4 {v(X2T+4*m,4)}, {v(vFr)}, {s(sX2,4)}, s56 offen offset:{1024*m}", "epi")
            Q.issue(f"buffer_load_dwordx4 {v(X1T+4*m,4)}, {v(vFr)}, {s(sX1,4)}, s56 offen offset:{1024*m}", "epi")
        A(f"v_add_u32 v14, {5*2048}, {v(vCol)}")
        col_loads(Q, GB, 14, sMs, 0, 4, "epi")
    G.run(Q, sWs, act_load, lambda rb, nb: ACC + 4*nb, late=(36, pre))
    Q.wait("epi")
    X2, X1 = 72, 88
    unpack(A, X2, X2T, 8)
    unpack(A, X1, X1T, 8)
    A.nop(4)
    for i in range(16):
        A(f"v_add_f32 {v(X1+i)}, {v(X1+i)}, {v(ACC+i)}")
        A(f"v_fma_f32 {v(X2+i)}, {v(GB+i)}, {v(X1+i)}, {v(X2+i)}")
    PK = 104
    for i in range(8): A(f"v_cvt_pk_bf16_f32 {v(PK+i)}, {v(X2+2*i)}, {v(X2+2*i+1)}")
    A.nop(2)
    for m in range(2):
        A(f"v_permlane16_swap_b32 {v(PK+4*m)}, {v(PK+4*m+2)}")
        A(f"v_permlane16_swap_b32 {v(PK+4*m+1)}, {v(PK+4*m+3)}")
    for m in range(2):
        A(f"buffer_store_dwordx4 {v(PK+4*m,4)}, {v(vOut)}, {s(sOut,4)}, 0 offen offset:{64*m}")
    A.label(f"{name}_end")
    A("s_endpgm")
    return dict(name=name, asm=A, grid=256, block=256, lds=G.lds_bytes, nv=256 + G.agprs, acc=256, ns=80)
```

```python
import sys
import build, gen_k0, gen_mega

def kernels(stamps=False):
    return [gen_k0.gen_k0(stamps=stamps), gen_mega.gen_mega(stamps=stamps)]

if __name__ == "__main__":
    asm = build.assemble(kernels())
    out = sys.argv[1] if len(sys.argv) > 1 else "adaLN_cond__mha_block_cached__mixer_s_mlp__prompt.s"
    open(out, "w").write(asm)
    print(out, len(asm), "bytes")
```

```python
from gen_common import *

K0_NMOD, K0_NCS, K0_NXN, K0_NPF = 48, 28, 128, 52
K0_GRID = K0_NMOD + K0_NCS + K0_NXN + K0_NPF

def gen_k0(name="k0_kernel", stamps=False):
    A = Asm()
    ST = Stamps(A, 64, stamps, region=0)
    A(f"s_cmp_ge_u32 s2, {K0_GRID}")
    A(f"s_cbranch_scc1 {name}_end")
    A(f"s_load_dwordx2 s[4:5], s[0:1], {KA_WS}")
    A(f"s_load_dwordx2 s[6:7], s[0:1], {KA_C}")
    A(f"s_load_dwordx2 s[8:9], s[0:1], {KA_WMOD}")
    A(f"s_load_dwordx2 s[10:11], s[0:1], {KA_W3}")
    A(f"s_load_dwordx2 s[12:13], s[0:1], {KA_X}")
    A(f"s_load_dwordx2 s[14:15], s[0:1], {KA_WQ}")
    A("s_waitcnt lgkmcnt(0)")
    ST.stamp()
    A(f"s_cmp_ge_u32 s2, {K0_NMOD + K0_NCS + K0_NXN}")
    A(f"s_cbranch_scc1 {name}_pf")
    A(f"s_cmp_ge_u32 s2, {K0_NMOD + K0_NCS}")
    A(f"s_cbranch_scc1 {name}_xn")
    A(f"s_mov_b32 s24, {512*6144}")
    A(f"s_mov_b32 s25, {512*3584}")
    A("s_mov_b32 s26, 6144")
    A("s_mov_b32 s27, 3584")
    A(f"s_sub_u32 s28, s2, {K0_NMOD}")
    A(f"s_cmp_lt_u32 s2, {K0_NMOD}")
    A("s_cselect_b32 s16, s8, s10")
    A("s_cselect_b32 s17, s9, s11")
    A("s_cselect_b32 s18, s24, s25")
    A("s_cselect_b32 s29, s26, s27")
    A("s_cselect_b32 s30, s2, s28")
    A("s_cselect_b32 s31, 1, 0")
    A("s_and_b32 s17, s17, 0xffff")
    A("s_mov_b32 s19, 0x20000")
    srd(A, 20, 6, 1024)
    A("v_and_b32 v1, 7, v0")
    A("v_lshrrev_b32 v2, 3, v0")
    A("s_lshl_b32 s33, s29, 4")
    A("v_mul_lo_u32 v3, v2, s33")
    A("v_lshl_add_u32 v3, v1, 4, v3")
    A("s_lshl_b32 s34, s30, 7")
    A("v_add_u32 v3, s34, v3")
    A("v_lshlrev_b32 v4, 2, v0")
    A("buffer_load_dword v5, v4, s[20:23], 0 offen")
    A("s_mov_b32 s35, 0")
    for i in range(16):
        A(f"buffer_load_dwordx4 {v(16+4*i,4)}, v3, s[16:19], s35 offen")
        if i < 15:
            A("s_add_u32 s35, s35, s29")
    A("s_waitcnt vmcnt(16)")
    A("v_lshlrev_b32 v6, 16, v5")
    A("v_and_b32 v7, 0xffff0000, v5")
    A(f"v_mul_f32 v8, {f32hex(-math.log2(math.e))}, v6")
    A(f"v_mul_f32 v9, {f32hex(-math.log2(math.e))}, v7")
    A("v_exp_f32 v8, v8")
    A("v_exp_f32 v9, v9")
    A("s_nop 0")
    A("v_add_f32 v8, 1.0, v8")
    A("v_add_f32 v9, 1.0, v9")
    A("v_rcp_f32 v8, v8")
    A("v_rcp_f32 v9, v9")
    A("s_nop 0")
    A("v_mul_f32 v6, v6, v8")
    A("v_mul_f32 v7, v7, v9")
    A("v_cvt_pk_bf16_f32 v8, v6, v7")
    A("v_lshlrev_b32 v6, 16, v8")
    A("v_and_b32 v7, 0xffff0000, v8")
    A("s_cmp_eq_u32 s31, 1")
    A(f"s_cbranch_scc1 {name}_havea")
    A("v_mov_b32 v6, 1.0")
    A("v_mov_b32 v7, 1.0")
    A.label(f"{name}_havea")
    A("v_lshlrev_b32 v4, 3, v0")
    A("ds_write_b64 v4, v[6:7]")
    A("s_waitcnt lgkmcnt(0)")
    A("s_barrier")
    A("v_lshlrev_b32 v4, 6, v2")
    for i in range(4):
        A(f"ds_read_b128 {v(80+4*i,4)}, v4 offset:{16*i}")
    for j in range(8):
        A(f"v_mov_b32 {v(96+j)}, 0")
    A("s_waitcnt lgkmcnt(0)")
    for i in range(16):
        A(f"s_waitcnt vmcnt({15-i})")
        for j in range(4):
            w = 16 + 4*i + j
            A(f"v_lshlrev_b32 v10, 16, {v(w)}")
            A(f"v_and_b32 v11, 0xffff0000, {v(w)}")
            A(f"v_fmac_f32 {v(96+2*j)}, v10, {v(80+i)}")
            A(f"v_fmac_f32 {v(96+2*j+1)}, v11, {v(80+i)}")
    A("v_lshlrev_b32 v4, 8, v2")
    A("v_lshl_add_u32 v4, v1, 5, v4")
    A("ds_write_b128 v4, v[96:99] offset:2048")
    A("ds_write_b128 v4, v[100:103] offset:2064")
    A("s_waitcnt lgkmcnt(0)")
    A("s_barrier")
    A("v_cmp_gt_u32 vcc, 64, v0")
    A("s_and_saveexec_b64 s[36:37], vcc")
    A(f"s_cbranch_execz {name}_fin")
    A("v_lshlrev_b32 v4, 2, v0")
    for kg in range(32):
        A(f"ds_read_b32 {v(16+kg)}, v4 offset:{2048+256*kg}")
    A("s_waitcnt lgkmcnt(0)")
    for st in (16, 8, 4, 2, 1):
        for j in range(st):
            A(f"v_add_f32 {v(16+j)}, {v(16+j)}, {v(16+j+st)}")
    A("s_lshl_b32 s34, s30, 8")
    A("v_add_u32 v4, s34, v4")
    A("s_cmp_eq_u32 s31, 1")
    A(f"s_cbranch_scc1 {name}_ismod")
    srd(A, 40, 4, 1792*4, WS_CS3)
    A("buffer_store_dword v16, v4, s[40:43], 0 offen")
    A(f"s_branch {name}_fin")
    A.label(f"{name}_ismod")
    A("v_cvt_pk_bf16_f32 v16, v16, v16")
    A("v_lshlrev_b32 v16, 16, v16")
    A("s_lshr_b32 s38, s30, 3")
    A("s_cmp_eq_u32 s38, 1")
    A("s_cselect_b32 s39, 1, 0")
    A("s_cmp_eq_u32 s38, 4")
    A("s_cselect_b32 s39, 1, s39")
    A("s_cmp_eq_u32 s39, 0")
    A(f"s_cbranch_scc1 {name}_nog")
    A("v_add_f32 v16, 1.0, v16")
    A("v_cvt_pk_bf16_f32 v16, v16, v16")
    A("v_lshlrev_b32 v16, 16, v16")
    A.label(f"{name}_nog")
    srd(A, 40, 4, 3072*4, WS_MOD)
    A("buffer_store_dword v16, v4, s[40:43], 0 offen")
    A("s_cmp_ge_u32 s30, 16")
    A(f"s_cbranch_scc1 {name}_fin")
    srd(A, 44, 4, 1024*4, WS_QSG)
    A(f"v_mul_f32 v17, {f32hex(QSCALE)}, v16")
    A("buffer_store_dword v17, v4, s[44:47], 0 offen")
    A(f"s_branch {name}_fin")
    A.label(f"{name}_xn")
    A(f"s_sub_u32 s28, s2, {K0_NMOD + K0_NCS}")
    srd(A, 16, 12, 2048*1024)
    srd(A, 20, 4, 2048*1024, WS_XN)
    A("v_lshrrev_b32 v1, 6, v0")
    A("v_and_b32 v2, 63, v0")
    A("s_lshl_b32 s29, s28, 14")
    A("v_lshlrev_b32 v3, 12, v1")
    A("v_lshl_add_u32 v3, v2, 4, v3")
    for j in range(4):
        A(f"buffer_load_dwordx4 {v(16+4*j,4)}, v3, s[16:19], s29 offen offset:{1024*j}")
    A("v_lshrrev_b32 v4, 2, v2")
    A("v_lshlrev_b32 v4, 10, v4")
    A("v_and_b32 v5, 3, v2")
    A("v_lshl_add_u32 v4, v5, 8, v4")
    A("v_lshl_add_u32 v4, v1, 6, v4")
    A("s_waitcnt vmcnt(0)")
    X = lambda j, e: 32 + 8*j + e
    for j in range(4):
        for e in range(4):
            A(f"v_lshlrev_b32 {v(X(j,2*e))}, 16, {v(16+4*j+e)}")
            A(f"v_and_b32 {v(X(j,2*e+1))}, 0xffff0000, {v(16+4*j+e)}")
    S = [64, 65, 66, 67]; T = [68, 69, 70, 71]
    def rowsum(term):
        for j in range(4):
            term(j)
        allreduce16(A, S)
        allreduce_rows(A, S, T)
    def t1(j):
        A(f"v_add_f32 {v(S[j])}, {v(X(j,0))}, {v(X(j,1))}")
        for e in range(2, 8):
            A(f"v_add_f32 {v(S[j])}, {v(S[j])}, {v(X(j,e))}")
    rowsum(t1)
    for j in range(4):
        A(f"v_mul_f32 {v(S[j])}, {f32hex(1/512)}, {v(S[j])}")
    for j in range(4):
        for e in range(8):
            A(f"v_sub_f32 {v(X(j,e))}, {v(X(j,e))}, {v(S[j])}")
    def t2(j):
        A(f"v_mul_f32 {v(S[j])}, {v(X(j,0))}, {v(X(j,0))}")
        for e in range(1, 8):
            A(f"v_fmac_f32 {v(S[j])}, {v(X(j,e))}, {v(X(j,e))}")
    rowsum(t2)
    A(f"s_mov_b32 s30, {f32hex(1e-5)}")
    for j in range(4):
        A(f"v_mov_b32 {v(T[j])}, s30")
    for j in range(4):
        A(f"v_fmac_f32 {v(T[j])}, {f32hex(1/512)}, {v(S[j])}")
    for j in range(4):
        A(f"v_rsq_f32 {v(T[j])}, {v(T[j])}")
    A("s_nop 0")
    for j in range(4):
        for e in range(8):
            A(f"v_mul_f32 {v(X(j,e))}, {v(X(j,e))}, {v(T[j])}")
    for j in range(4):
        for e in range(4):
            A(f"v_cvt_pk_f16_f32 {v(16+4*j+e)}, {v(X(j,2*e))}, {v(X(j,2*e+1))}")
    for j in range(4):
        A(f"buffer_store_dwordx4 {v(16+4*j,4)}, v4, s[20:23], s29 offen offset:{16*j}")
    A(f"s_branch {name}_fin")
    A.label(f"{name}_pf")
    A(f"s_cmp_eq_u32 s2, {K0_NMOD + K0_NCS + K0_NXN}")
    A(f"s_cbranch_scc0 {name}_pf2")
    srd(A, 20, 4, 32768, 0x20000)
    A("v_lshlrev_b32 v2, 4, v0")
    for i in range(4): A(f"v_mov_b32 {v(100+i)}, 0")
    for i in range(8):
        A("buffer_store_dwordx4 v[100:103], v2, s[20:23], 0 offen")
        A("v_add_u32 v2, 4096, v2")
    A.label(f"{name}_pf2")
    srd(A, 16, 14, 512*8192)
    A(f"s_sub_u32 s28, s2, {K0_NMOD + K0_NCS + K0_NXN}")
    A(f"s_mul_i32 s28, s28, {20*4096}")
    A("v_lshlrev_b32 v1, 4, v0")
    A("v_add_u32 v1, s28, v1")
    for i in range(20):
        A(f"buffer_load_dwordx4 {v(4+4*i,4)}, v1, s[16:19], 0 offen")
        if i < 19: A("v_add_u32 v1, 4096, v1")
    A("s_waitcnt vmcnt(0)")
    A.label(f"{name}_fin")
    if stamps:
        A("s_mov_b64 exec, -1")
        A("s_waitcnt vmcnt(0)")
        ST.stamp()
        ST.flush(4, 56, 8)
    A.label(f"{name}_end")
    A("s_endpgm")
    return dict(name=name, asm=A, nstamp=locals().get('STP', locals().get('ST')).n, grid=K0_GRID, block=256, lds=2048 + 8192, nv=104, acc=104, ns=80)
```

```python
from gen_common import *

SIG = (0, 2, 1, 3)
LDS_MOD = 131072
K1_LDS = LDS_MOD + 4096 + 256

class VmQ:
    def __init__(self, A):
        self.A = A; self.q = []
    def issue(self, text, tag):
        if len(self.q) >= 62:
            self.A("s_waitcnt vmcnt(48)")
            self.q = self.q[-48:]
        self.A(text); self.q.append(tag)
    def count_for(self, tags):
        last = -1
        for i, t in enumerate(self.q):
            if t in tags: last = i
        return None if last < 0 else len(self.q) - 1 - last
    def wait(self, *tags, extra=""):
        n = self.count_for(tags)
        if n is None:
            if extra: self.A(f"s_waitcnt {extra}")
            return
        self.A(f"s_waitcnt vmcnt({n}) {extra}".rstrip())
        self.q = self.q[len(self.q) - n:] if n else []

def interleave(A, mfmas, gaps):
    for i, m in enumerate(mfmas):
        A(m)
        for f in gaps[i]:
            f() if callable(f) else A(f)

def gen_k1(name="k1_kernel", stamps=False, prefetch=True):
    A = Asm()
    ST = Stamps(A, 64, stamps, region=1)
    sKs, sVs, sWQ, sXN, sQS, sOs = 8, 12, 16, 20, 24, 28
    sW, sHead, sQblk, sTile, sWb, sTmp, sTmp2, sIter = 32, 33, 34, 35, 36, 37, 38, 39
    sXo = 40
    sRb = 44
    O0 = 128
    def Oacc(db, qb): return O0 + (db * 4 + qb) * 4
    Qf = lambda qb, ks: (qb * 4 + ks) * 4
    KF = lambda buf, f: 64 + buf * 32 + f * 4
    VF = lambda buf, db: 128 + buf * 32 + db * 4
    ONES = 192
    vLane, vTmp = 1, 2
    vXNo = 4
    vWQ = 8
    vGS = 10
    vT = 12
    AW = 20
    GS = 28
    XR = 60
    vKD = 124
    vVD = 2
    KAd = lambda ks, hi: 8 + ks * 2 + hi
    VAd = lambda db, hi: 16 + db * 2 + hi
    Sb = lambda buf: 32 + buf * 8
    Pb = lambda buf: 48 + buf * 4
    NM = lambda qb: 56 + qb * 4
    Lacc = lambda qb: 72 + qb * 4
    TM = 88

    A("s_cmp_ge_u32 s2, 256")
    A(f"s_cbranch_scc1 {name}_end")
    A(f"s_load_dwordx2 s[4:5], s[0:1], {KA_WS}")
    A(f"s_load_dwordx4 s[48:51], s[0:1], {KA_K}")
    A(f"s_load_dwordx4 s[52:55], s[0:1], {KA_WQ}")
    A(f"s_load_dwordx4 s[56:59], s[0:1], {KA_W1}")
    A(f"s_load_dwordx4 s[60:63], s[0:1], {KA_W3}")
    A(f"v_lshrrev_b32 {v(vTmp)}, 6, v0")
    A(f"v_and_b32 {v(vLane)}, 63, v0")
    A("s_and_b32 s33, s2, 7")
    A("s_lshl_b32 s33, s33, 2")
    A("s_lshr_b32 s37, s2, 3")
    A("s_and_b32 s37, s37, 3")
    A(f"s_add_u32 {s(sHead)}, s33, s37")
    A(f"s_lshr_b32 {s(sQblk)}, s2, 5")
    A(f"v_readfirstlane_b32 {s(sW)}, {v(vTmp)}")
    A("s_waitcnt lgkmcnt(0)")
    A(f"s_lshl_b32 {s(sTmp)}, {s(sHead)}, 19")
    for d, b in ((sKs, 48), (sVs, 50)):
        A(f"s_add_u32 {s(d)}, {s(b)}, {s(sTmp)}")
        A(f"s_addc_u32 {s(d+1)}, {s(b+1)}, 0")
        A(f"s_and_b32 {s(d+1)}, {s(d+1)}, 0xffff")
        A(f"s_mov_b32 {s(d+2)}, 524288")
        A(f"s_mov_b32 {s(d+3)}, 0x20000")
    A(f"s_lshl_b32 {s(sTmp)}, {s(sHead)}, 8")
    A(f"s_add_u32 {s(sWQ)}, s52, {s(sTmp)}")
    A(f"s_addc_u32 {s(sWQ+1)}, s53, 0")
    A(f"s_and_b32 {s(sWQ+1)}, {s(sWQ+1)}, 0xffff")
    A(f"s_sub_u32 {s(sWQ+2)}, {512*8192}, {s(sTmp)}")
    A(f"s_mov_b32 {s(sWQ+3)}, 0x20000")
    srd(A, sXN, 4, 2048*1024, WS_XN)
    srd(A, sQS, 4, 4096, WS_QSG)
    srd(A, sOs, 4, 2048*8192, WS_O)
    for i in range(4):
        A(f"s_mov_b32 {s(sXo+i)}, {4096*i}")
    A(f"s_lshl_b32 {s(sRb)}, {s(sQblk)}, 4")
    A(f"s_lshl_b32 {s(sTmp)}, {s(sW)}, 2")
    A(f"s_add_u32 {s(sRb)}, {s(sRb)}, {s(sTmp)}")
    li, lg = 12, 13
    A(f"v_and_b32 {v(li)}, 15, {v(vLane)}")
    A(f"v_lshrrev_b32 {v(lg)}, 4, {v(vLane)}")
    A(f"s_lshl_b32 {s(sTmp)}, {s(sRb)}, 14")
    A(f"v_lshlrev_b32 {v(14)}, 4, {v(vLane)}")
    A(f"v_add_u32 {v(vXNo)}, {s(sTmp)}, {v(14)}")
    for qb in range(1, 4):
        A(f"v_add_u32 {v(vXNo+qb)}, {16384*qb}, {v(vXNo)}")
    A(f"s_lshl_b32 {s(sTmp)}, {s(sW)}, 5")
    A(f"v_add_u32 {v(14)}, {s(sTmp)}, {v(lg)}")
    A(f"v_lshlrev_b32 {v(14)}, 13, {v(14)}")
    for u in range(2):
        A(f"v_or_b32 {v(15)}, {4*u}, {v(lg)}")
        A(f"v_lshlrev_b32 {v(15)}, 1, {v(15)}")
        A(f"v_xor_b32 {v(15)}, {v(15)}, {v(li)}")
        A(f"v_lshl_add_u32 {v(vWQ+u)}, {v(15)}, 4, {v(14)}")
    A(f"s_lshl_b32 {s(sTmp)}, {s(sW)}, 4")
    A(f"v_add_u32 {v(14)}, {s(sTmp)}, {v(lg)}")
    A(f"v_lshlrev_b32 {v(14)}, 8, {v(14)}")
    for m in range(4):
        A(f"v_or_b32 {v(15)}, {4*m}, {v(lg)}")
        A(f"v_xor_b32 {v(15)}, {v(15)}, {v(li)}")
        A(f"v_lshl_add_u32 {v(vKD+m)}, {v(15)}, 4, {v(14)}")
    for u in range(2):
        A(f"v_or_b32 {v(15)}, {4*u}, {v(lg)}")
        A(f"v_lshlrev_b32 {v(15)}, 1, {v(15)}")
        A(f"v_xor_b32 {v(15)}, {v(15)}, {v(li)}")
        A(f"v_lshl_add_u32 {v(vVD+u)}, {v(15)}, 4, {v(14)}")
    tr_r, tr_c, tr_f, tr_lo = 14, 15, 16, 17
    def tr_parts():
        A(f"v_and_b32 {v(li)}, 15, {v(vLane)}")
        A(f"v_lshrrev_b32 {v(lg)}, 4, {v(vLane)}")
        A(f"v_lshrrev_b32 {v(tr_r)}, 2, {v(li)}")
        A(f"v_and_b32 {v(tr_c)}, 3, {v(li)}")
        A(f"v_and_b32 {v(tr_f)}, 1, {v(lg)}")
        A(f"v_lshl_or_b32 {v(tr_f)}, {v(tr_f)}, 2, {v(tr_r)}")
        A(f"v_lshlrev_b32 {v(tr_lo)}, 3, {v(tr_c)}")
    tr_parts()
    A(f"v_lshl_add_u32 {v(18)}, {v(lg)}, 3, {v(tr_r)}")
    A(f"v_lshl_add_u32 {v(18)}, {v(18)}, 8, {v(tr_lo)}")
    for db in range(8):
        A(f"v_xor_b32 {v(19)}, {db}, {v(tr_f)}")
        A(f"v_lshl_add_u32 {v(AW+db)}, {v(19)}, 5, {v(18)}")
    A(f"v_lshlrev_b32 {v(vGS)}, 5, {v(lg)}")
    A(f"v_add_u32 {v(vGS)}, {LDS_MOD}, {v(vGS)}")

    ST.stamp()
    Q = VmQ(A)
    A(f"s_lshl_b32 {s(sTmp)}, {s(sW)}, 10")
    A(f"s_add_u32 m0, {s(sTmp)}, {LDS_MOD}")
    A(f"v_lshlrev_b32 {v(14)}, 4, {v(vLane)}")
    Q.issue(f"buffer_load_dwordx4 {v(14)}, {s(sQS,4)}, {s(sTmp)} offen lds", "mod")
    A(f"s_lshl_b32 {s(sWb)}, {s(sW)}, 13")
    def wq_dma(c, m):
        A(f"s_add_u32 m0, {s(sWb)}, {c*32768 + m*1024}")
        A(f"s_mov_b32 {s(sTmp2)}, {(128*c + 4*m)*8192}")
        Q.issue(f"buffer_load_dwordx4 {v(vWQ + ((m>>1)&1))}, {s(sWQ,4)}, {s(sTmp2)} offen lds", f"wq{c}")
    def xn_load(ks, qb):
        r = XR + (ks % 4) * 16 + qb * 4
        Q.issue(f"buffer_load_dwordx4 {v(r,4)}, {v(vXNo+qb)}, {s(sXN,4)}, {s(sXo + (ks>>2))} offen offset:{(ks&3)*1024}", f"xn{ks}")
    for m in range(8): wq_dma(0, m)
    for ks in range(2):
        for qb in range(4): xn_load(ks, qb)
    for m in range(8): wq_dma(1, m)
    for qb in range(4): xn_load(2, qb)
    for m in range(8): wq_dma(2, m)
    for m in range(8): wq_dma(3, m)
    for r in range(O0, O0 + 128):
        A(f"v_mov_b32 {v(r)}, 0")
    def a_reads(ks):
        out = []
        for db in range(8):
            for j in range(2):
                off = ((ks >> 2) & 1) * 32768 + (ks & 3) * 8192 + j * 1024
                out.append(f"ds_read_b64_tr_b16 {a(KF(ks & 1, db) + 2*j, 2)}, {v(AW+db)} offset:{off}")
        return out
    def gs_reads(ks):
        b = GS + (ks & 1) * 16
        return [f"ds_read_b128 {v(b + 4*i, 4)}, {v(vGS)} offset:{(i >> 1) * 2048 + ks * 128 + (i & 1) * 16}" for i in range(4)]
    def modulate(ks):
        b = GS + (ks & 1) * 16
        out = []
        for qb in range(4):
            r = XR + (ks % 4) * 16 + qb * 4
            for j in range(4):
                t0, t1 = vT + 2*(j & 1), vT + 2*(j & 1) + 1
                out.append(f"v_fma_mix_f32 {v(t0)}, {v(r+j)}, {v(b+8+2*j)}, {v(b+2*j)} op_sel:[0,0,0] op_sel_hi:[1,0,0]")
                out.append(f"v_fma_mix_f32 {v(t1)}, {v(r+j)}, {v(b+8+2*j+1)}, {v(b+2*j+1)} op_sel:[1,0,0] op_sel_hi:[1,0,0]")
                out.append(f"v_cvt_pk_bf16_f32 {v(r+j)}, {v(t0)}, {v(t1)}")
        return out
    Q.wait("mod", "wq0")
    A("s_barrier")
    ST.stamp()
    for x in gs_reads(0) + gs_reads(1) + a_reads(0): A(x)
    Q.wait("xn0", extra="lgkmcnt(0)")
    for x in modulate(0): A(x)
    A.nop(2)
    def kv_dma(t, n, q=True):
        stage = t % 4
        txt = []
        if n == 0: txt.append(f"s_add_u32 m0, {s(sWb)}, {stage*32768}")
        if n == 4: txt.append(f"s_add_u32 m0, {s(sWb)}, {stage*32768 + 16384}")
        if n < 4: ld = f"buffer_load_dwordx4 {v(vKD+n)}, {s(sKs,4)}, {s(sTile)} offen offset:{1024*n} lds"
        else: ld = f"buffer_load_dwordx4 {v(vVD+((n-4)&1))}, {s(sVs,4)}, {s(sTile)} offen offset:{1024*(n-4)} lds"
        return txt, ld
    for ks in range(16):
        mf = []
        for db in range(8):
            for qb in range(4):
                d = Oacc(db, qb)
                mf.append(f"v_mfma_f32_16x16x32_bf16 {v(d,4)}, {a(KF(ks & 1, db),4)}, {v(XR + (ks % 4)*16 + qb*4, 4)}, {v(d,4)}")
        gaps = [[] for _ in range(32)]
        pre = []
        if ks < 15:
            nxt = ks + 1
            if nxt % 4 == 0:
                pre.append(lambda c=nxt // 4: Q.wait(f"wq{c}"))
                pre.append("s_barrier")
                if nxt == 8:
                    pre += [f"v_add_u32 {v(AW+db)}, 0x10000, {v(AW+db)}" for db in range(8)]
            ds = a_reads(nxt) + (gs_reads(ks + 2) if ks + 2 < 16 else [])
            va = modulate(nxt)
            pre.append(lambda k=nxt: Q.wait(f"xn{k}"))
            idx = 0
            for i in range(32):
                if i < len(ds): gaps[i].append(ds[i])
            slots = [i for i in range(32)]
            per = [0] * 32
            k = 0
            cap = [1 if i < len(ds) else 2 for i in range(32)]
            extra = len(va) - sum(cap)
            i = 31
            while extra > 0:
                cap[i] += 1; extra -= 1; i -= 4
                if i < 0: i = 30
            for i in range(32):
                for _ in range(cap[i]):
                    if k < len(va): gaps[i].append(va[k]); k += 1
            assert k == len(va)
            if ks + 3 < 16:
                for qb in range(4):
                    gaps[3 + 8*qb].append(lambda k=ks + 3, q=qb: xn_load(k, q))
        if ks >= 8:
            t = (ks - 8) // 4
            for n2 in range(2):
                n = ((ks - 8) % 4) * 2 + n2
                def emit(t=t, n=n):
                    txt, ld = kv_dma(t, n)
                    if n == 0: A(f"s_mov_b32 {s(sTile)}, {t*16384}");
                    if n == 0 and t == 0: A(f"s_lshl_b32 {s(sWb)}, {s(sW)}, 12")
                    for x in txt: A(x)
                    A("s_nop 0")
                    Q.issue(ld, f"kv{t}")
                gaps[5 + 16*n2].append(emit)
        for f in pre:
            f() if callable(f) else A(f)
        if ks < 15:
            pass
        interleave(A, mf, gaps)
        if ks < 15:
            A("s_waitcnt lgkmcnt(0)")
            A.nop(1)
    ST.stamp()
    A.nop(8)
    for qb in range(4):
        for ks in range(4):
            x0, x1 = Oacc(2*ks, qb), Oacc(2*ks+1, qb)
            t = vT + (ks & 1) * 4
            A(f"v_cvt_pk_bf16_f32 {v(t)}, {v(x0)}, {v(x0+1)}")
            A(f"v_cvt_pk_bf16_f32 {v(t+1)}, {v(x0+2)}, {v(x0+3)}")
            A(f"v_cvt_pk_bf16_f32 {v(t+2)}, {v(x1)}, {v(x1+1)}")
            A(f"v_cvt_pk_bf16_f32 {v(t+3)}, {v(x1+2)}, {v(x1+3)}")
            for r in range(4):
                A(f"v_mov_b32 {v(x0+r)}, 0")
            A(f"v_permlane16_swap_b32 {v(t)}, {v(t+2)}")
            A(f"v_permlane16_swap_b32 {v(t+1)}, {v(t+3)}")
            for r in range(4):
                A(f"v_mov_b32 {v(x1+r)}, 0")
            for r in range(4):
                A(f"v_accvgpr_write_b32 {a(Qf(qb,ks)+r)}, {v(t+r)}")
    li, lg = TM, TM + 1
    tr_r, tr_c, tr_f, tr_lo = TM + 2, TM + 3, TM + 4, TM + 5
    tr_parts()
    A(f"v_and_b32 {v(TM+6)}, 1, {v(lg)}")
    A(f"v_lshlrev_b32 {v(TM+6)}, 1, {v(TM+6)}")
    A(f"v_lshrrev_b32 {v(TM+7)}, 1, {v(lg)}")
    A(f"v_or_b32 {v(TM+6)}, {v(TM+6)}, {v(TM+7)}")
    A(f"v_lshlrev_b32 {v(TM+7)}, 8, {v(li)}")
    for ks in range(4):
        A(f"v_or_b32 {v(TM+8)}, {4*ks}, {v(TM+6)}")
        A(f"v_xor_b32 {v(TM+8)}, {v(TM+8)}, {v(li)}")
        A(f"v_lshl_add_u32 {v(KAd(ks,0))}, {v(TM+8)}, 4, {v(TM+7)}")
        A(f"v_add_u32 {v(KAd(ks,1))}, 0x10000, {v(KAd(ks,0))}")
    vOst = 9 + 115
    A(f"v_lshl_add_u32 {v(TM+7)}, {v(lg)}, 2, {v(tr_r)}")
    A(f"v_lshl_add_u32 {v(TM+7)}, {v(TM+7)}, 8, {v(tr_lo)}")
    for db in range(8):
        A(f"v_xor_b32 {v(TM+8)}, {db}, {v(tr_f)}")
        A(f"v_lshl_add_u32 {v(VAd(db,0))}, {v(TM+8)}, 5, {v(TM+7)}")
        A(f"v_add_u32 {v(VAd(db,1))}, 0x10000, {v(VAd(db,0))}")
    A(f"v_mov_b32 {v(TM)}, 0x3f803f80")
    for r in range(4):
        A(f"v_accvgpr_write_b32 {a(ONES+r)}, {v(TM)}")
    A(f"v_mov_b32 {v(TM)}, 0")
    for r in range(32):
        A(f"v_accvgpr_write_b32 {a(VF(1,0)+r)}, {v(TM)}")
    for r in range(16):
        A(f"v_mov_b32 {v(Lacc(0)+r)}, 0")
    for r in range(4):
        A(f"v_mov_b32 {v(Pb(1)+r)}, 0")

    def k_read(G, f):
        t = (G >> 1) % 4; kb, ks = f >> 2, f & 3
        off = (t & 1) * 32768 + (G & 1) * 8192 + kb * 4096
        return f"ds_read_b128 {a(KF(G & 1, f),4)}, {v(KAd(ks, t >> 1))} offset:{off}"
    def v_read(G, db, j):
        t = (G >> 1) % 4
        off = (t & 1) * 32768 + 16384 + (G & 1) * 8192 + j * 4096
        return f"ds_read_b64_tr_b16 {a(VF(G & 1, db) + 2*j, 2)}, {v(VAd(db, t >> 1))} offset:{off}"
    def qk(G, qb, dst, c):
        out = []
        for kb in range(2):
            for ks in range(4):
                d = dst + 4*kb
                cc = (c if c == "0" else v(c, 4)) if ks == 0 else v(d, 4)
                out.append(f"v_mfma_f32_16x16x32_bf16 {v(d,4)}, {a(KF(G & 1, kb*4+ks),4)}, {a(Qf(qb,ks),4)}, {cc}")
        return out
    Q.wait("kv0", "kv1")
    A("s_barrier")
    A(f"s_mov_b32 {s(sTile)}, {2*16384}")
    for n in range(5):
        txt, ld = kv_dma(2, n)
        for x in txt: A(x)
        A("s_nop 0")
        A(ld)
    for f in range(8): A(k_read(0, f))
    A("s_waitcnt lgkmcnt(0)")
    for qb in range(4):
        for m in qk(0, qb, TM + 8*qb, "0"): A(m)
    A.nop(8)
    mx = [Sb(0) + qb for qb in range(4)]
    for qb in range(4):
        b = TM + 8*qb
        A(f"v_max3_f32 {v(mx[qb])}, {v(b)}, {v(b+1)}, {v(b+2)}")
    for qb in range(4):
        b = TM + 8*qb
        A(f"v_max3_f32 {v(mx[qb])}, {v(mx[qb])}, {v(b+3)}, {v(b+4)}")
    for qb in range(4):
        b = TM + 8*qb
        A(f"v_max3_f32 {v(mx[qb])}, {v(mx[qb])}, {v(b+5)}, {v(b+6)}")
    for qb in range(4):
        b = TM + 8*qb
        A(f"v_max_f32 {v(mx[qb])}, {v(mx[qb])}, {v(b+7)}")
    allreduce_rows(A, mx, [Sb(0) + 4 + qb for qb in range(4)], op="v_max_f32")
    for qb in range(4):
        for r in range(4):
            A(f"v_sub_f32 {v(NM(qb)+r)}, 0, {v(mx[qb])}")
    sPF, sPFo = 92, 46
    vPF, vPFd = 120, 116
    if prefetch:
        A(f"s_lshl_b32 {s(sPFo)}, s2, 2")
        A(f"s_add_u32 {s(sPFo)}, {s(sPFo)}, {s(sW)}")
        A(f"s_cmp_lt_u32 {s(sPFo)}, 512")
        A(f"s_cselect_b32 {s(sPF)}, s56, s58")
        A(f"s_cselect_b32 {s(sPF+1)}, s57, s59")
        A(f"s_and_b32 {s(sPF+1)}, {s(sPF+1)}, 0xffff")
        A(f"s_mov_b32 {s(sPF+2)}, {512*1024}")
        A(f"s_mov_b32 {s(sPF+3)}, 0x20000")
        A(f"s_and_b32 {s(sTmp)}, {s(sPFo)}, 511")
        A(f"s_lshl_b32 {s(sTmp)}, {s(sTmp)}, 10")
        A(f"v_lshlrev_b32 {v(vPF)}, 4, {v(vLane)}")
        A(f"s_lshl_b32 {s(sPFo)}, {s(sPFo)}, 10")
        A(f"v_add_u32 {v(vPF+1)}, {s(sTmp)}, {v(vPF)}")
        A(f"buffer_load_dwordx4 {v(vPFd,4)}, {v(vPF+1)}, {s(sPF,4)}, 0 offen")
    A.label(f"{name}_restart")
    for x in [k_read(1, 0), k_read(1, 1)]: A(x)
    for db in range(6):
        for j in range(2): A(v_read(0, db, j))
    A.nop(2)
    for m in qk(0, 0, Sb(0), NM(0)): A(m)
    A("s_waitcnt lgkmcnt(0)")
    ST.stamp()
    A(f"s_mov_b32 {s(sIter)}, 8")
    A(f"s_mov_b32 {s(sXo+0)}, {1792*1024}")
    A.nop(6)
    A.raw(".p2align 6")
    A.label(f"{name}_loop")
    for tt in range(4):
        for ls in range(8):
            kg, p = ls >> 2, ls & 3
            G = 2*tt + kg
            j = 8*tt + ls
            Gn, qn = (G, p + 1) if p < 3 else (G + 1, 0)
            Gp, qp = (G, p - 1) if p > 0 else (G - 1, 3)
            mf = qk(Gn, qn, Sb((j + 1) & 1), NM(qn))
            for db in range(8):
                d = Oacc(db, qp)
                mf.append(f"v_mfma_f32_16x16x32_bf16 {v(d,4)}, {a(VF(Gp & 1, db),4)}, {v(Pb((j-1) & 1),4)}, {v(d,4)}")
            d = Lacc(qp)
            mf.append(f"v_mfma_f32_16x16x32_bf16 {v(d,4)}, {a(ONES,4)}, {v(Pb((j-1) & 1),4)}, {v(d,4)}")
            sb, pb = Sb(j & 1), Pb(j & 1)
            E = [f"v_exp_f32 {v(sb+i)}, {v(sb+i)}" for i in range(8)]
            C = [f"v_cvt_pk_bf16_f32 {v(pb+i)}, {v(sb+2*i)}, {v(sb+2*i+1)}" for i in range(4)]
            if p == 3: kr = [k_read(G + 2, 0), k_read(G + 2, 1)]
            else: kr = [k_read(G + 1, 2 + 2*p), k_read(G + 1, 3 + 2*p)]
            if p == 0: vr = [v_read(G, db, jj) for db in (6, 7) for jj in range(2)]
            else: vr = [v_read(G + 1, db, jj) for db in (2*(p-1), 2*(p-1) + 1) for jj in range(2)]
            DS = kr + vr
            if ls >= 3: T, n = tt + 3, ls - 3
            else: T, n = tt + 2, ls + 5
            txt, ld = kv_dma(T, n)
            gaps = [[] for _ in range(17)]
            for i in range(8): gaps[2*i].append(E[i])
            for i in range(6): gaps[2*i + 1].append(DS[i])
            gaps[3].append(C[0]); gaps[7].append(C[1]); gaps[11].append(C[2]); gaps[15].append(C[3])
            for x in txt: gaps[9].append(x)
            gaps[13].append(ld)
            if p == 1: gaps[5].append("s_waitcnt lgkmcnt(3)")
            if prefetch and tt == 0 and ls == 0:
                gaps[1].append(f"s_cmp_gt_u32 {s(sIter)}, 4")
                gaps[3].append(f"s_cselect_b32 {s(sPF)}, s54, s60")
                gaps[5].append(f"s_cselect_b32 {s(sPF+1)}, s55, s61")
                gaps[7].append(f"s_cselect_b32 {s(sPF+2)}, {4096*1024}, {s(sXo+0)}")
                gaps[9].append(f"s_cmp_le_u32 {s(sIter)}, 2")
                gaps[11].append(f"s_cselect_b32 {s(sPF)}, s62, {s(sPF)}")
                gaps[15].append(f"s_cselect_b32 {s(sPF+1)}, s63, {s(sPF+1)}")
            if prefetch and tt == 0 and ls == 1:
                gaps[1].append(f"s_and_b32 {s(sPF+1)}, {s(sPF+1)}, 0xffff")
                gaps[3].append(f"s_sub_u32 {s(sXo+1)}, 8, {s(sIter)}")
                gaps[7].append(f"s_cmp_lt_u32 {s(sXo+1)}, 4")
                gaps[9].append(f"s_cselect_b32 {s(sXo+2)}, 3, 1")
                gaps[11].append(f"s_and_b32 {s(sXo+1)}, {s(sXo+1)}, {s(sXo+2)}")
                gaps[15].append(f"s_lshl_b32 {s(sXo+1)}, {s(sXo+1)}, 20")
                gaps[16].append(f"s_add_u32 {s(sXo+1)}, {s(sXo+1)}, {s(sPFo)}")
            if prefetch and tt == 0 and ls == 2:
                gaps[5].append(f"v_add_u32 {v(vPF+1)}, {s(sXo+1)}, {v(vPF)}")
                gaps[15].append(f"buffer_load_dwordx4 {v(vPFd,4)}, {v(vPF+1)}, {s(sPF,4)}, 0 offen")
            if ls == 2:
                nv_ = 9 if (prefetch and tt in (0, 1)) else 8
                gaps[16] += [f"s_waitcnt vmcnt({nv_}) lgkmcnt(4)", "s_barrier"]
                gaps[15].append(f"s_add_u32 {s(sTile)}, {s(sTile)}, 16384")
                gaps[16].append(f"s_min_u32 {s(sTile)}, {s(sTile)}, {31*16384}")
            elif p == 2:
                gaps[16].append("s_waitcnt lgkmcnt(4)")
            if tt == 3 and ls == 7:
                gaps[1].append(f"s_sub_u32 {s(sIter)}, {s(sIter)}, 1")
                gaps[16] += [f"s_cmp_lg_u32 {s(sIter)}, 0", f"s_cbranch_scc1 {name}_loop"]
            interleave(A, mf, gaps)
    A.nop(1)
    for db in range(8):
        d = Oacc(db, 3)
        A(f"v_mfma_f32_16x16x32_bf16 {v(d,4)}, {a(VF(1, db),4)}, {v(Pb(1),4)}, {v(d,4)}")
    A(f"v_mfma_f32_16x16x32_bf16 {v(Lacc(3),4)}, {a(ONES,4)}, {v(Pb(1),4)}, {v(Lacc(3),4)}")
    ST.stamp()
    A("s_waitcnt vmcnt(0)")
    A(f"v_lshlrev_b32 {v(10)}, 4, {v(vLane)}")
    A(f"s_lshl_b32 {s(sTmp)}, {s(sRb)}, 17")
    A(f"s_lshl_b32 {s(sTmp2)}, {s(sHead)}, 12")
    A(f"s_add_u32 {s(sTmp)}, {s(sTmp)}, {s(sTmp2)}")
    A.nop(4)
    for qb in range(4):
        A(f"v_rcp_f32 {v(12+qb)}, {v(Lacc(qb))}")
    A.nop(1)
    for qb in range(4):
        for m in range(4):
            x0, x1 = Oacc(2*m, qb), Oacc(2*m+1, qb)
            t = 16 + ((qb*4 + m) % 4) * 4
            for r in range(4):
                A(f"v_mul_f32 {v(x0+r)}, {v(x0+r)}, {v(12+qb)}")
                A(f"v_mul_f32 {v(x1+r)}, {v(x1+r)}, {v(12+qb)}")
            A(f"v_cvt_pk_bf16_f32 {v(t)}, {v(x0)}, {v(x0+1)}")
            A(f"v_cvt_pk_bf16_f32 {v(t+1)}, {v(x0+2)}, {v(x0+3)}")
            A(f"v_cvt_pk_bf16_f32 {v(t+2)}, {v(x1)}, {v(x1+1)}")
            A(f"v_cvt_pk_bf16_f32 {v(t+3)}, {v(x1+2)}, {v(x1+3)}")
            A(f"buffer_store_dwordx4 {v(t,4)}, {v(10)}, {s(sOs,4)}, {s(sTmp)} offen offset:{1024*m}")
        if qb < 3:
            A(f"s_add_u32 {s(sTmp)}, {s(sTmp)}, 131072")
    if stamps:
        A("s_waitcnt vmcnt(0)")
        ST.stamp()
        ST.flush(4, 56, 8)
    A.label(f"{name}_end")
    A("s_endpgm")
    return dict(name=name, asm=A, nstamp=locals().get('STP', locals().get('ST')).n, grid=256, block=256, lds=K1_LDS, nv=512, acc=256, ns=96)
```

```python
from gen_common import *
from gen_k1 import VmQ, interleave

WS_EB = 0x8000
WS_CONST = 0xC000
WS_FLAG = 0x20000
F_O, F_1, F_2, F_3, F_4, F_SIDE = 0, 64, 96, 128, 160, 176
NFLAG = 256
SC = "sc1"

LDS_MOD = 131072
LDS_MISC = LDS_MOD + 4096
MEGA_LDS = LDS_MISC + 1024

sWG, sWS, sWV = 2, 4, 32
sFL = 72
SPIN_LIMIT = 100000
import os
SLEEP_SPIN, SLEEP_POLL, SLEEP_O = [int(x) for x in os.environ.get('SLEEPS', '16,4,8').split(',')]

class Mega:
    def __init__(self, name, stamps=False):
        self.name = name
        self.A = Asm()
        self.Q = VmQ(self.A)
        self.stamps = stamps
        self.nstamp = 0
        self.uid = 0
        self.names = []
        self.fine = False
        self.stop_after_attn = False

    def lab(self, base):
        self.uid += 1
        return f"{self.name}_{base}{self.uid}"

    def stamp_setup(self, vaddr, vt):
        if not self.stamps: return
        A = self.A
        srd(A, 68, sWS, 1 << 18, WS_STAMP + (1 << 18))
        A(f"s_lshl_b32 s64, s{sWG}, 2")
        A(f"s_add_u32 s64, s64, s{sWV}")
        A("s_lshl_b32 s64, s64, 8")
        A(f"v_mov_b32 {v(vt)}, 0x7f000000")
        A(f"v_mov_b32 {v(vaddr)}, s64")
        A("v_cmp_eq_u32 vcc, 0, v1")
        A("s_nop 1")
        A(f"v_cndmask_b32 {v(vaddr)}, {v(vt)}, {v(vaddr)}, vcc")
        self.vstamp = vaddr
    def stamp(self, vt, label=""):
        if not self.stamps or self.nstamp >= 32: return
        import inspect
        fr = inspect.stack()[1]
        owner = fr.frame.f_locals.get("self")
        self.names.append((type(owner).__name__ + "." if owner is not None else "") + fr.function + (":" + label if label else ""))
        A = self.A
        A("s_memtime s[64:65]")
        A("s_memrealtime s[66:67]")
        A("s_waitcnt lgkmcnt(0)")
        A(f"v_mov_b32 {v(vt)}, s64")
        A(f"v_mov_b32 {v(vt+1)}, s66")
        self.Q.issue(f"buffer_store_dwordx2 {v(vt,2)}, {v(self.vstamp)}, s[68:71], 0 offen offset:{8*self.nstamp}", "stamp")
        A("s_nop 1")
        self.nstamp += 1

    def signal(self, sOff, vt, tag):
        A = self.A
        self.Q.wait(tag)
        A("s_barrier")
        l = self.lab("sig")
        A(f"s_cmp_eq_u32 s{sWV}, 0")
        A(f"s_cbranch_scc0 {l}")
        A(f"v_mov_b32 {v(vt)}, 0")
        A(f"v_mov_b32 {v(vt+1)}, 1")
        A("s_mov_b64 exec, 1")
        A(f"buffer_atomic_add {v(vt+1)}, {v(vt)}, {s(sFL,4)}, {s(sOff)} offen sc1")
        A("s_mov_b64 exec, -1")
        A.label(l)

    def signal_wave(self, sOff, vt, tag):
        A = self.A
        self.Q.wait(tag)
        A(f"v_mov_b32 {v(vt)}, 0")
        A(f"v_mov_b32 {v(vt+1)}, 1")
        A("s_mov_b64 exec, 1")
        A(f"buffer_atomic_add {v(vt+1)}, {v(vt)}, {s(sFL,4)}, {s(sOff)} offen sc1")
        A("s_mov_b64 exec, -1")

    def vpoll_loop(self, items, vt, sleep, first_wait=None):
        A = self.A
        lp, lq = self.lab("pl"), self.lab("pq")
        if first_wait is None:
            self.vpoll_issue(items, vt, track=False)
            first_wait = 0
        A(f"s_mov_b64 exec, {(1 << len(items)) - 1}")
        A(f"s_mov_b32 s3, {SPIN_LIMIT}")
        A(f"s_waitcnt vmcnt({first_wait})")
        A.label(lp)
        A(f"v_cmp_ge_u32 vcc, {v(vt+2)}, {v(vt+1)}")
        A("s_sub_u32 s3, s3, 1")
        A("s_cmp_eq_u32 s3, 0")
        A(f"s_cbranch_scc1 {lq}")
        A("s_cmp_eq_u64 vcc, exec")
        A(f"s_cbranch_scc1 {lq}")
        A(f"s_sleep {sleep}")
        A(f"buffer_load_dword {v(vt+2)}, {v(vt)}, {s(sFL,4)}, 0 offen sc1")
        A("s_waitcnt vmcnt(0)")
        A(f"s_branch {lp}")
        A.label(lq)
        A("s_mov_b64 exec, -1")

    def vpoll_issue(self, items, vt, track=True):
        A = self.A
        A(f"v_mov_b32 {v(vt)}, {s(items[0][0])}")
        A(f"v_mov_b32 {v(vt+1)}, {items[0][1]}")
        for i, (o, t) in enumerate(items[1:], 1):
            A(f"v_writelane_b32 {v(vt)}, {s(o)}, {i}")
            A(f"v_writelane_b32 {v(vt+1)}, {t}, {i}")
        A(f"s_mov_b64 exec, {(1 << len(items)) - 1}")
        txt = f"buffer_load_dword {v(vt+2)}, {v(vt)}, {s(sFL,4)}, 0 offen sc1"
        if track: self.Q.issue(txt, "poll")
        else: A(txt)
        A("s_mov_b64 exec, -1")

    def spin(self, sOff, target, vt=20, sleep=SLEEP_SPIN):
        self.vpoll_loop([(sOff, target)], vt, sleep)

    def poll_begin(self, *groups):
        self.poll = groups

    def poll_end(self, vt=20, sleep=SLEEP_POLL, then=None):
        A = self.A
        l = self.lab("pe")
        A(f"s_cmp_eq_u32 s{sWV}, 0")
        A(f"s_cbranch_scc0 {l}")
        for items in self.poll:
            self.vpoll_loop(items, vt, sleep)
        if then: then()
        A.label(l)
        A("s_barrier")

def flag_off(A, dst, base_idx, sIdx):
    A(f"s_lshl_b32 {s(dst)}, {s(sIdx)}, 7")
    A(f"s_add_u32 {s(dst)}, {s(dst)}, {base_idx*128}")

class Gemm:
    def __init__(self, M, NB, RB, nks, CK, RD, pitch, PD=None, ahead=2, nextra=0):
        self.M, self.A, self.Q = M, M.A, M.Q
        self.NB, self.RB, self.nks, self.CK, self.RD, self.pitch = NB, RB, nks, CK, RD, pitch
        self.nch = nks // CK
        self.PD = PD if PD is not None else (self.nch if self.nch <= RD else RD - 1)
        self.ahead = ahead
        self.rowb = NB * 32
        self.ksb = 32 * self.rowb
        self.ndma = self.ksb // 1024 // 4
        self.lds_bytes = self.ksb * CK * min(RD, self.nch)
        self.nbuf = ahead + 1
        self.WF = lambda ks, nb: (ks % self.nbuf) * NB * 4 + nb * 4
        self.act0 = self.nbuf * NB * 4
        self.nact = min(RD, self.nch) * CK
        self.AF = lambda ks, rb: self.act0 + ((ks % self.nact) * RB + rb) * 4
        self.agprs = self.act0 + self.nact * RB * 4
        self.nhi = (self.lds_bytes + 65535) // 65536

    def setup(self, sCol0B, sSRD, vWD, vTR, tmp, sM0, sSo, sT):
        A = self.A; NB = self.NB; vLane = 1
        self.r = dict(vWD=vWD, vTR=vTR, sM0=sM0, sSo=sSo, srd=sSRD)
        t = tmp
        li, lg, tr, tc, tf, tb = t, t+1, t+2, t+3, t+4, t+5
        if NB == 4:
            A(f"v_lshrrev_b32 {v(lg)}, 3, {v(vLane)}")
            A(f"v_and_b32 {v(li)}, 7, {v(vLane)}")
            A(f"v_and_b32 {v(tf)}, 6, {v(lg)}")
            A(f"v_xor_b32 {v(li)}, {v(li)}, {v(tf)}")
            A(f"s_lshl_b32 {s(sT)}, s{sWV}, 3")
            A(f"v_add_u32 {v(lg)}, {s(sT)}, {v(lg)}")
            A(f"s_mov_b32 {s(sT)}, {self.pitch}")
            A(f"v_mul_lo_u32 {v(lg)}, {v(lg)}, {s(sT)}")
            A(f"v_lshl_add_u32 {v(vWD)}, {v(li)}, 4, {v(lg)}")
            A(f"v_add_u32 {v(vWD)}, {s(sCol0B)}, {v(vWD)}")
            A(f"s_lshl_b32 {s(sM0)}, s{sWV}, 10")
        else:
            assert NB == 8
            A(f"v_lshrrev_b32 {v(lg)}, 4, {v(vLane)}")
            A(f"v_and_b32 {v(li)}, 15, {v(vLane)}")
            A(f"s_lshl_b32 {s(sT)}, s{sWV}, 3")
            A(f"v_add_u32 {v(tb)}, {s(sT)}, {v(lg)}")
            A(f"s_mov_b32 {s(sT)}, {self.pitch}")
            A(f"v_mul_lo_u32 {v(tb)}, {v(tb)}, {s(sT)}")
            A(f"v_add_u32 {v(tb)}, {s(sCol0B)}, {v(tb)}")
            for m in range(2):
                A(f"v_or_b32 {v(tf)}, {4*m}, {v(lg)}")
                A(f"v_lshlrev_b32 {v(tf)}, 1, {v(tf)}")
                A(f"v_xor_b32 {v(tf)}, {v(tf)}, {v(li)}")
                A(f"v_lshl_add_u32 {v(vWD+m)}, {v(tf)}, 4, {v(tb)}")
                if m == 1:
                    A(f"v_add_u32 {v(vWD+m)}, {4*self.pitch}, {v(vWD+m)}")
            A(f"s_lshl_b32 {s(sM0)}, s{sWV}, 11")
        A(f"v_and_b32 {v(li)}, 15, {v(vLane)}")
        A(f"v_lshrrev_b32 {v(lg)}, 4, {v(vLane)}")
        A(f"v_lshrrev_b32 {v(tr)}, 2, {v(li)}")
        A(f"v_and_b32 {v(tc)}, 3, {v(li)}")
        A(f"v_lshl_add_u32 {v(tb)}, {v(lg)}, 2, {v(tr)}")
        if NB == 4:
            A(f"v_lshrrev_b32 {v(tf)}, 1, {v(tb)}")
            A(f"v_and_b32 {v(tf)}, 3, {v(tf)}")
            A(f"v_lshlrev_b32 {v(tb)}, 7, {v(tb)}")
        else:
            A(f"v_and_b32 {v(tf)}, 7, {v(tb)}")
            A(f"v_lshlrev_b32 {v(tb)}, 8, {v(tb)}")
        A(f"v_lshl_add_u32 {v(tb)}, {v(tc)}, 3, {v(tb)}")
        for nb in range(NB):
            A(f"v_xor_b32 {v(tr)}, {nb}, {v(tf)}")
            A(f"v_lshl_add_u32 {v(vTR + nb*self.nhi)}, {v(tr)}, 5, {v(tb)}")
            for h in range(1, self.nhi):
                A(f"v_add_u32 {v(vTR + nb*self.nhi + h)}, {65536*h}, {v(vTR + nb*self.nhi)}")
        self.tf, self.tb = tf, tb

    def lds_off(self, ks):
        c, i = divmod(ks, self.CK)
        return ((c % self.RD) * self.CK + i) * self.ksb

    def w_dma(self, ks):
        A = self.A; r = self.r
        for m in range(self.ndma):
            A(f"s_add_u32 m0, {s(r['sM0'])}, {self.lds_off(ks) + m*1024}")
            if m == 0: A(f"s_mov_b32 {s(r['sSo'])}, {ks * 32 * self.pitch}")
            else: A("s_nop 0")
            self.Q.issue(f"buffer_load_dwordx4 {v(r['vWD']+m)}, {s(r['srd'],4)}, {s(r['sSo'])} offen lds", f"w{ks // self.CK}")

    def issue_weights(self, part="all"):
        A, Q = self.A, self.Q
        if part != "all":
            l = self.M.lab("iw")
            A(f"s_cmp_eq_u32 s{sWV}, 0")
            A(f"s_cbranch_scc{1 if part == 'early' else 0} {l}")
        q = list(Q.q)
        for c in range(min(self.PD, self.nch)):
            for i in range(self.CK): self.w_dma(c * self.CK + i)
        if part == "late": Q.q = q
        if part != "all": A.label(l)

    def w_reads(self, ks):
        out = []
        for nb in range(self.NB):
            for j in range(2):
                off = self.lds_off(ks) + j * 16 * self.rowb
                hi, lo = divmod(off, 65536)
                out.append(f"ds_read_b64_tr_b16 {a(self.WF(ks, nb) + 2*j, 2)}, {v(self.r['vTR'] + nb*self.nhi + hi)} offset:{lo}")
        return out

    def run(self, act_load, acc, first=None, overlap=None, late=None, init=False):
        A, Q = self.A, self.Q; CK, RD, nks, ah = self.CK, self.RD, self.nks, self.ahead
        if first: first()
        for c in range(min(self.PD, self.nch)):
            for i in range(CK):
                for rb in range(self.RB): act_load(c * CK + i, rb)
        if overlap: overlap()
        self.M.stamp(self.M.vtmp)
        Q.wait("w0", "a0")
        A("s_barrier")
        self.M.stamp(self.M.vtmp)
        def reads(k):
            return self.w_reads(k) if k < nks else []
        per_ks = len(reads(0))
        for k in range(ah):
            for x in reads(k): A(x)
        for ks in range(nks):
            c, i = divmod(ks, CK)
            inflight = sum(len(reads(k)) for k in range(ks + 1, ks + ah))
            assert inflight <= 15
            A(f"s_waitcnt lgkmcnt({inflight})")
            if i == CK - ah and c + 1 < self.nch:
                Q.wait(f"w{c+1}", f"a{c+1}")
                A("s_barrier")
            mf = []
            for nb in range(self.NB):
                for rb in range(self.RB):
                    d = acc(rb, nb)
                    cc = "0" if (ks == 0 and not init) else v(d, 4)
                    mf.append(f"v_mfma_f32_16x16x32_bf16 {v(d,4)}, {a(self.WF(ks, nb),4)}, {a(self.AF(ks, rb),4)}, {cc}")
            ds = reads(ks + ah)
            loads = []
            if late and ks in late: loads.append(late[ks])
            if c + self.PD < self.nch:
                k2 = (c + self.PD) * CK + i
                loads.append(lambda k2=k2: self.w_dma(k2))
                for rb in range(self.RB): loads.append(lambda k2=k2, rb=rb: act_load(k2, rb))
            n = len(mf)
            per = -(-len(ds) // n) if self.NB == 4 else 2
            for q, m in enumerate(mf):
                A(m)
                for x in ds[q*per:(q+1)*per]: A(x)
                if q == n - 1:
                    for f in loads: f()

class GemmK:
    SL = 8
    def __init__(self, M, nks, pitch):
        self.M, self.A, self.Q = M, M.A, M.Q
        self.nks, self.pitch = nks, pitch
        self.WF = lambda ks, nb: (ks & 1) * 16 + nb * 4
        self.AF = lambda ks, j: 32 + (ks % self.SL) * 16 + j * 4
    def setup(self, sCol0B, sSRD, vWD, vTR, tmp, sM0, sSo, sT):
        A = self.A
        self.r = dict(vWD=vWD, vTR=vTR, sM0=sM0, sSo=sSo, srd=sSRD)
        li, lg, tr, tc, tf, tb = [tmp + i for i in range(6)]
        A(f"v_lshrrev_b32 {v(lg)}, 3, v1")
        A(f"v_and_b32 {v(li)}, 7, v1")
        A(f"v_and_b32 {v(tf)}, 6, {v(lg)}")
        A(f"v_xor_b32 {v(li)}, {v(li)}, {v(tf)}")
        A(f"s_mov_b32 {s(sT)}, {self.pitch}")
        A(f"v_mul_lo_u32 {v(lg)}, {v(lg)}, {s(sT)}")
        A(f"v_lshl_add_u32 {v(vWD)}, {v(li)}, 4, {v(lg)}")
        A(f"v_add_u32 {v(vWD)}, {s(sCol0B)}, {v(vWD)}")
        for n in range(1, 4):
            A(f"v_add_u32 {v(vWD+n)}, {n*(8*self.pitch - 1024)}, {v(vWD)}")
        A(f"s_lshl_b32 {s(sM0)}, s{sWV}, 15")
        A(f"v_and_b32 {v(li)}, 15, v1")
        A(f"v_lshrrev_b32 {v(lg)}, 4, v1")
        A(f"v_lshrrev_b32 {v(tr)}, 2, {v(li)}")
        A(f"v_and_b32 {v(tc)}, 3, {v(li)}")
        A(f"v_lshl_add_u32 {v(tb)}, {v(lg)}, 2, {v(tr)}")
        A(f"v_lshrrev_b32 {v(tf)}, 1, {v(tb)}")
        A(f"v_and_b32 {v(tf)}, 3, {v(tf)}")
        A(f"v_lshlrev_b32 {v(tb)}, 7, {v(tb)}")
        A(f"v_lshl_add_u32 {v(tb)}, {v(tc)}, 3, {v(tb)}")
        A(f"v_add_u32 {v(tb)}, {s(sM0)}, {v(tb)}")
        for nb in range(4):
            A(f"v_xor_b32 {v(tr)}, {nb}, {v(tf)}")
            A(f"v_lshl_add_u32 {v(vTR + nb)}, {v(tr)}, 5, {v(tb)}")
    def w_dma(self, ks, wso):
        A = self.A; r = self.r
        A(f"s_add_u32 m0, {s(r['sM0'])}, {(ks % self.SL) * 4096}")
        wso(ks)
        for n in range(4):
            if os.environ.get("T1X") == "now" and self.nks == 32: continue
            self.Q.issue(f"buffer_load_dwordx4 {v(r['vWD']+n)}, {s(r['srd'],4)}, {s(r['sSo'])} offen offset:{1024*n} lds", f"k{ks}")
    def w_reads(self, ks):
        return [f"ds_read_b64_tr_b16 {a(self.WF(ks, nb) + 2*j, 2)}, {v(self.r['vTR'] + nb)} offset:{(ks % self.SL)*4096 + j*2048}"
                for nb in range(4) for j in range(2)]
    def run(self, wso, act_load, acc, init0=False, gate=None, late=None, D=7, w_early=False):
        A, Q, nks = self.A, self.Q, self.nks
        def loads(k):
            if gate and k in gate: gate[k]()
            if not (w_early and k < D): self.w_dma(k, wso)
            for j in range(4): act_load(k, j)
        for k in range(min(D, nks)): loads(k)
        self.M.stamp(self.M.vtmp)
        Q.wait("k0")
        self.M.stamp(self.M.vtmp)
        for x in self.w_reads(0): A(x)
        for ks in range(nks):
            if self.M.fine == "t1" and nks == 32 and ks in (4, 8, 9, 10, 14, 18, 22, 26, 30): self.M.stamp(self.M.vtmp, f"ks{ks}")
            if ks + 1 < nks: Q.wait(f"k{ks+1}", extra="lgkmcnt(0)")
            else: A("s_waitcnt lgkmcnt(0)")
            mf = []
            for nb in range(4):
                for j in range(4):
                    d = acc(j, nb)
                    cc = "0" if (ks == 0 and not (init0 and j == 0)) else v(d, 4)
                    mf.append(f"v_mfma_f32_16x16x32_bf16 {v(d,4)}, {a(self.WF(ks, nb),4)}, {a(self.AF(ks, j),4)}, {cc}")
            ds = self.w_reads(ks + 1) if ks + 1 < nks else []
            for q, m in enumerate(mf):
                A(m)
                if q < len(ds): A(ds[q])
                if q == 8:
                    if ks + D < nks: loads(ks + D)
                    if late and ks in late: late[ks]()
    def reduce(self, acc, vt):
        A = self.A; r = self.r
        A.nop(8)
        A(f"v_lshlrev_b32 {v(vt)}, 4, v1")
        A(f"v_add_u32 {v(vt)}, {s(r['sM0'])}, {v(vt)}")
        for j in range(1, 4):
            for nb in range(4):
                A(f"ds_write_b128 {v(vt)}, {v(acc(j, nb),4)} offset:{j*4096 + nb*1024}")
        for j in range(1, 4):
            A(f"s_xor_b32 s51, s{sWV}, {j}")
            A("s_lshl_b32 s51, s51, 15")
            A(f"v_lshlrev_b32 {v(vt+j)}, 4, v1")
            A(f"v_add_u32 {v(vt+j)}, s51, {v(vt+j)}")
        A("s_waitcnt lgkmcnt(0)")
        A("s_barrier")
        for j in range(1, 4):
            for nb in range(4):
                A(f"ds_read_b128 {v(acc(j, nb),4)}, {v(vt+j)} offset:{j*4096 + nb*1024}")
        for j in range(1, 4):
            A(f"s_waitcnt lgkmcnt({8 - 4*(j-1)})")
            for i in range(0, 16, 2):
                A(f"v_pk_add_f32 {v(acc(0,0)+i,2)}, {v(acc(0,0)+i,2)}, {v(acc(j,0)+i,2)}")

def act_loader(M, G, vaddr, srd_, sso=52):
    state = [None]
    def f(ks, rb):
        if (ks >> 2) != state[0]:
            state[0] = ks >> 2
            M.A(f"s_mov_b32 s{sso}, {(ks >> 2) * 4096}")
        va = vaddr(ks, rb) if callable(vaddr) else vaddr
        M.Q.issue(f"buffer_load_dwordx4 {a(G.AF(ks, rb),4)}, {v(va)}, {s(srd_,4)}, s{sso} offen offset:{(ks & 3)*1024} {SC}", f"a{ks // G.CK}")
    return f

def gelu_pk(A, regs, tmps, sc1, vc0):
    n = len(regs) // 2
    P = lambda r: v(r, 2)
    for i in range(n): A(f"v_pk_mul_f32 {P(tmps[2*i])}, {P(regs[2*i])}, {P(regs[2*i])}")
    for i in range(n): A(f"v_pk_fma_f32 {P(tmps[2*i])}, {P(tmps[2*i])}, {s(sc1,2)}, {P(vc0)}")
    for i in range(n): A(f"v_pk_mul_f32 {P(tmps[2*i])}, {P(tmps[2*i])}, {P(regs[2*i])}")
    for t in tmps: A(f"v_exp_f32 {v(t)}, {v(t)}")
    A("s_nop 0")
    for i in range(n): A(f"v_pk_add_f32 {P(tmps[2*i])}, {P(tmps[2*i])}, 1.0 op_sel_hi:[1,0]")
    for t in tmps: A(f"v_rcp_f32 {v(t)}, {v(t)}")
    A("s_nop 0")
    for i in range(n): A(f"v_pk_mul_f32 {P(regs[2*i])}, {P(regs[2*i])}, {P(tmps[2*i])}")

def gelu_consts(A, sc1, vpair):
    c0 = -2.0 * math.log2(math.e) * math.sqrt(2.0 / math.pi)
    c1 = c0 * 0.044715
    A(f"s_mov_b32 {s(sc1)}, {f32hex(c1)}")
    A(f"s_mov_b32 {s(sc1+1)}, {f32hex(c1)}")
    A(f"v_mov_b32 {v(vpair)}, {f32hex(c0)}")
    A(f"v_mov_b32 {v(vpair+1)}, {f32hex(c0)}")

def unpack(A, dst, src, n):
    for i in range(n):
        A(f"v_lshlrev_b32 {v(dst+2*i)}, 16, {v(src+i)}")
        A(f"v_and_b32 {v(dst+2*i+1)}, 0xffff0000, {v(src+i)}")

def col_loads(Q, dst, vcol, srd_, NB, tag):
    for nb in range(NB):
        Q.issue(f"buffer_load_dwordx4 {v(dst+4*nb,4)}, {v(vcol)}, {s(srd_,4)}, 0 offen offset:{64*nb}", tag)

def row_stats(A, s1, s2, mu, r, tmp):
    inv = f32hex(1/512)
    A(f"v_mul_f32 {v(mu)}, {inv}, {v(s1)}")
    A(f"v_mul_f32 {v(tmp)}, {inv}, {v(s2)}")
    A(f"v_fma_f32 {v(tmp)}, -{v(mu)}, {v(mu)}, {v(tmp)}")
    A(f"v_max_f32 {v(tmp)}, 0, {v(tmp)}")
    A(f"v_add_f32 {v(tmp)}, {f32hex(1e-5)}, {v(tmp)}")
    A(f"v_rsq_f32 {v(r)}, {v(tmp)}")
    A("s_nop 0")

def kptr(A, d, off, n=2):
    A(f"s_load_dwordx{n} {s(d,n)}, s[0:1], {off}")


SIG = (0, 2, 1, 3)

def stage_attn(M, next_pre, prefetch=True):
    A, Q, name = M.A, M.Q, M.name
    sKs, sVs, sWQ, sXN, sQS, sOs = 8, 12, 16, 20, 24, 28
    sW, sHead, sQblk, sTile, sWb, sTmp, sTmp2, sIter = sWV, 33, 34, 35, 36, 37, 38, 39
    sXo, sRb = 40, 44
    O0 = 128
    Oacc = lambda db, qb: O0 + (db * 4 + qb) * 4
    Qacc = lambda db, qb: 128 + (db * 4 + qb) * 4
    Qf = lambda qb, ks: (qb * 4 + ks) * 4
    KF = lambda buf, f: 64 + buf * 32 + f * 4
    VF = lambda buf, db: 128 + buf * 32 + db * 4
    vLane = 1
    vVD, vKD = 2, 124
    vXNo = 4
    KAd = lambda ks, hi: 8 + ks * 2 + hi
    VAd = lambda db, hi: 16 + db * 2 + hi
    Sb = lambda buf: 32 + buf * 8
    Pb = lambda buf: 48 + buf * 4
    NM = lambda qb: 56 + qb * 4
    Lacc = lambda qb: 72 + qb * 4
    ONES = 88
    TM = 92
    vWQ, vGS, vT, AW, GS = 32, 34, 36, 44, 52
    XR = 128

    A(f"s_load_dwordx4 s[48:51], s[0:1], {KA_K}")
    A(f"s_load_dwordx4 s[52:55], s[0:1], {KA_WQ}")
    A(f"s_load_dwordx4 s[56:59], s[0:1], {KA_W1}")
    A(f"s_load_dwordx4 s[60:63], s[0:1], {KA_W3}")
    A(f"s_and_b32 s33, s{sWG}, 7")
    A("s_lshl_b32 s33, s33, 2")
    A(f"s_lshr_b32 s37, s{sWG}, 3")
    A("s_and_b32 s37, s37, 3")
    A(f"s_add_u32 {s(sHead)}, s33, s37")
    A(f"s_lshr_b32 {s(sQblk)}, s{sWG}, 5")
    A("s_waitcnt lgkmcnt(0)")
    A(f"s_lshl_b32 {s(sTmp)}, {s(sHead)}, 19")
    for d, b in ((sKs, 48), (sVs, 50)):
        A(f"s_add_u32 {s(d)}, {s(b)}, {s(sTmp)}")
        A(f"s_addc_u32 {s(d+1)}, {s(b+1)}, 0")
        A(f"s_and_b32 {s(d+1)}, {s(d+1)}, 0xffff")
        A(f"s_mov_b32 {s(d+2)}, 524288")
        A(f"s_mov_b32 {s(d+3)}, 0x20000")
    A(f"s_lshl_b32 {s(sTmp)}, {s(sHead)}, 8")
    A(f"s_add_u32 {s(sWQ)}, s52, {s(sTmp)}")
    A(f"s_addc_u32 {s(sWQ+1)}, s53, 0")
    A(f"s_and_b32 {s(sWQ+1)}, {s(sWQ+1)}, 0xffff")
    A(f"s_sub_u32 {s(sWQ+2)}, {512*8192}, {s(sTmp)}")
    A(f"s_mov_b32 {s(sWQ+3)}, 0x20000")
    srd(A, sXN, sWS, 2048*1024, WS_XN)
    srd(A, sQS, sWS, 4096, WS_QSG)
    srd(A, sOs, sWS, 2048*8192, WS_O)
    for i in range(4):
        A(f"s_mov_b32 {s(sXo+i)}, {4096*i}")
    A(f"s_lshl_b32 {s(sRb)}, {s(sQblk)}, 4")
    A(f"s_lshl_b32 {s(sTmp)}, {s(sW)}, 2")
    A(f"s_add_u32 {s(sRb)}, {s(sRb)}, {s(sTmp)}")
    li, lg, t0, t1 = 92, 93, 94, 95
    A(f"v_and_b32 {v(li)}, 15, {v(vLane)}")
    A(f"v_lshrrev_b32 {v(lg)}, 4, {v(vLane)}")
    A(f"s_lshl_b32 {s(sTmp)}, {s(sRb)}, 14")
    A(f"v_lshlrev_b32 {v(t0)}, 4, {v(vLane)}")
    A(f"v_add_u32 {v(vXNo)}, {s(sTmp)}, {v(t0)}")
    for qb in range(1, 4):
        A(f"v_add_u32 {v(vXNo+qb)}, {16384*qb}, {v(vXNo)}")
    A(f"s_lshl_b32 {s(sTmp)}, {s(sW)}, 5")
    A(f"v_add_u32 {v(t0)}, {s(sTmp)}, {v(lg)}")
    A(f"v_lshlrev_b32 {v(t0)}, 13, {v(t0)}")
    for u in range(2):
        A(f"v_or_b32 {v(t1)}, {4*u}, {v(lg)}")
        A(f"v_lshlrev_b32 {v(t1)}, 1, {v(t1)}")
        A(f"v_xor_b32 {v(t1)}, {v(t1)}, {v(li)}")
        A(f"v_lshl_add_u32 {v(vWQ+u)}, {v(t1)}, 4, {v(t0)}")

    SJ = 96
    sSide = 45
    sMs = 76
    srd(A, sMs, sWS, 3072*4, WS_MOD)
    A(f"s_cmp_lt_u32 s{sWG}, 17")
    A(f"s_cselect_b32 {s(sSide)}, 1, 0")
    A(f"s_cmp_eq_u32 {s(sW)}, 0")
    A(f"s_cselect_b32 {s(sSide)}, {s(sSide)}, 0")
    A(f"s_cmp_eq_u32 {s(sSide)}, 0")
    A(f"s_cbranch_scc1 {name}_sj0")
    A(f"s_cmp_eq_u32 s{sWG}, 16")
    A(f"s_cbranch_scc1 {name}_sjc")
    A(f"s_lshl_b32 {s(sTmp)}, s{sWG}, 7")
    A(f"v_lshl_add_u32 {v(SJ+16)}, {v(lg)}, 4, {s(sTmp)}")
    A(f"v_add_u32 {v(SJ+17)}, 64, {v(SJ+16)}")
    A(f"s_branch {name}_sjl")
    A.label(f"{name}_sjc")
    A(f"v_lshlrev_b32 {v(SJ+16)}, 5, {v(vLane)}")
    A(f"v_add_u32 {v(SJ+17)}, 16, {v(SJ+16)}")
    A.label(f"{name}_sjl")
    A(f"s_mov_b32 {s(sTmp)}, {3*2048}")
    A(f"s_mov_b32 {s(sTmp2)}, {4*2048}")
    A(f"buffer_load_dwordx4 {v(SJ,4)}, {v(SJ+16)}, {s(sMs,4)}, {s(sTmp)} offen")
    A(f"buffer_load_dwordx4 {v(SJ+4,4)}, {v(SJ+17)}, {s(sMs,4)}, {s(sTmp)} offen")
    A(f"buffer_load_dwordx4 {v(SJ+8,4)}, {v(SJ+16)}, {s(sMs,4)}, {s(sTmp2)} offen")
    A(f"buffer_load_dwordx4 {v(SJ+12,4)}, {v(SJ+17)}, {s(sMs,4)}, {s(sTmp2)} offen")
    A.label(f"{name}_sj0")

    M.stamp(M.vtmp)
    nq0 = len(Q.q)
    A(f"s_lshl_b32 {s(sTmp)}, {s(sW)}, 10")
    A(f"s_add_u32 m0, {s(sTmp)}, {LDS_MOD}")
    A(f"v_lshlrev_b32 {v(t0)}, 4, {v(vLane)}")
    Q.issue(f"buffer_load_dwordx4 {v(t0)}, {s(sQS,4)}, {s(sTmp)} offen lds", "mod")
    A(f"s_lshl_b32 {s(sWb)}, {s(sW)}, 13")
    def wq_dma(c, m):
        A(f"s_add_u32 m0, {s(sWb)}, {c*32768 + m*1024}")
        A(f"s_mov_b32 {s(sTmp2)}, {(128*c + 4*m)*8192}")
        Q.issue(f"buffer_load_dwordx4 {v(vWQ + ((m>>1)&1))}, {s(sWQ,4)}, {s(sTmp2)} offen lds", f"wq{c}")
    def xn_load(ks, qb):
        r = XR + (ks % 8) * 16 + qb * 4
        Q.issue(f"buffer_load_dwordx4 {v(r,4)}, {v(vXNo+qb)}, {s(sXN,4)}, {s(sXo + (ks>>2))} offen offset:{(ks&3)*1024}", f"xn{ks}")
    for m in range(8): wq_dma(0, m)
    for ks in range(2):
        for qb in range(4): xn_load(ks, qb)
    for m in range(8): wq_dma(1, m)
    for ks in range(2, 4):
        for qb in range(4): xn_load(ks, qb)
    for m in range(8): wq_dma(2, m)
    for ks in range(4, 6):
        for qb in range(4): xn_load(ks, qb)

    A(f"s_lshl_b32 {s(sTmp)}, {s(sW)}, 4")
    A(f"v_add_u32 {v(t0)}, {s(sTmp)}, {v(lg)}")
    A(f"v_lshlrev_b32 {v(t0)}, 8, {v(t0)}")
    for m in range(4):
        A(f"v_or_b32 {v(t1)}, {4*m}, {v(lg)}")
        A(f"v_xor_b32 {v(t1)}, {v(t1)}, {v(li)}")
        A(f"v_lshl_add_u32 {v(vKD+m)}, {v(t1)}, 4, {v(t0)}")
    for u in range(2):
        A(f"v_or_b32 {v(t1)}, {4*u}, {v(lg)}")
        A(f"v_lshlrev_b32 {v(t1)}, 1, {v(t1)}")
        A(f"v_xor_b32 {v(t1)}, {v(t1)}, {v(li)}")
        A(f"v_lshl_add_u32 {v(vVD+u)}, {v(t1)}, 4, {v(t0)}")
    tr_r, tr_c, tr_f, tr_lo, u0, u1 = 84, 85, 86, 87, 90, 91
    A(f"v_lshrrev_b32 {v(tr_r)}, 2, {v(li)}")
    A(f"v_and_b32 {v(tr_c)}, 3, {v(li)}")
    A(f"v_and_b32 {v(tr_f)}, 1, {v(lg)}")
    A(f"v_lshl_or_b32 {v(tr_f)}, {v(tr_f)}, 2, {v(tr_r)}")
    A(f"v_lshlrev_b32 {v(tr_lo)}, 3, {v(tr_c)}")
    A(f"v_lshl_add_u32 {v(u0)}, {v(lg)}, 3, {v(tr_r)}")
    A(f"v_lshl_add_u32 {v(u0)}, {v(u0)}, 8, {v(tr_lo)}")
    for db in range(8):
        A(f"v_xor_b32 {v(u1)}, {db}, {v(tr_f)}")
        A(f"v_lshl_add_u32 {v(AW+db)}, {v(u1)}, 5, {v(u0)}")
    A(f"v_lshlrev_b32 {v(vGS)}, 5, {v(lg)}")
    A(f"v_add_u32 {v(vGS)}, {LDS_MOD}, {v(vGS)}")
    A(f"v_lshl_add_u32 {v(u0)}, {v(lg)}, 2, {v(tr_r)}")
    A(f"v_lshl_add_u32 {v(u0)}, {v(u0)}, 8, {v(tr_lo)}")
    for db in range(8):
        A(f"v_xor_b32 {v(u1)}, {db}, {v(tr_f)}")
        A(f"v_lshl_add_u32 {v(VAd(db,0))}, {v(u1)}, 5, {v(u0)}")
        A(f"v_add_u32 {v(VAd(db,1))}, 0x10000, {v(VAd(db,0))}")
    A(f"v_and_b32 {v(u0)}, 1, {v(lg)}")
    A(f"v_lshlrev_b32 {v(u0)}, 1, {v(u0)}")
    A(f"v_lshrrev_b32 {v(u1)}, 1, {v(lg)}")
    A(f"v_or_b32 {v(u0)}, {v(u0)}, {v(u1)}")
    A(f"v_lshlrev_b32 {v(tr_lo)}, 8, {v(li)}")
    for ks in range(4):
        A(f"v_or_b32 {v(u1)}, {4*ks}, {v(u0)}")
        A(f"v_xor_b32 {v(u1)}, {v(u1)}, {v(li)}")
        A(f"v_lshl_add_u32 {v(KAd(ks,0))}, {v(u1)}, 4, {v(tr_lo)}")
        A(f"v_add_u32 {v(KAd(ks,1))}, 0x10000, {v(KAd(ks,0))}")
    for r in range(4):
        A(f"v_mov_b32 {v(ONES+r)}, 0x3f803f80")

    nside = len(Q.q) - nq0
    A(f"s_cmp_eq_u32 {s(sSide)}, 0")
    A(f"s_cbranch_scc1 {name}_sj1")
    A(f"s_waitcnt vmcnt({nside})")
    A(f"s_cmp_eq_u32 s{sWG}, 16")
    A(f"s_cbranch_scc1 {name}_sjc2")
    A(f"v_cmp_eq_u32 vcc, 1, {v(li)}")
    A(f"v_cmp_eq_u32 s[78:79], 2, {v(li)}")
    A(f"v_cmp_eq_u32 s[80:81], 0, {v(li)}")
    A("s_nop 1")
    E = SJ + 18
    for i in range(8): A(f"v_cndmask_b32 {v(E+i)}, 0, 1.0, vcc")
    for i in range(8): A(f"v_cndmask_b32 {v(E+i)}, {v(E+i)}, {v(SJ+8+i)}, s[78:79]")
    for i in range(8): A(f"v_cndmask_b32 {v(E+i)}, {v(E+i)}, {v(SJ+i)}, s[80:81]")
    for i in range(4): A(f"v_cvt_pk_bf16_f32 {v(SJ+i)}, {v(E+2*i)}, {v(E+2*i+1)}")
    srd(A, 84, sWS, 16384, WS_EB)
    A(f"s_lshl_b32 {s(sTmp)}, s{sWG}, 10")
    A(f"v_lshlrev_b32 {v(SJ+16)}, 4, {v(vLane)}")
    A(f"buffer_store_dwordx4 {v(SJ,4)}, {v(SJ+16)}, s[84:87], {s(sTmp)} offen {SC}")
    A(f"s_branch {name}_sj1")
    A.label(f"{name}_sjc2")
    C = SJ + 18
    for i in range(5): A(f"v_mov_b32 {v(C+i)}, 0")
    for i in range(8):
        sv, gv = SJ + i, SJ + 8 + i
        A(f"v_add_f32 {v(C)}, {v(C)}, {v(gv)}")
        A(f"v_add_f32 {v(C+1)}, {v(C+1)}, {v(sv)}")
        A(f"v_fmac_f32 {v(C+2)}, {v(gv)}, {v(gv)}")
        A(f"v_fmac_f32 {v(C+3)}, {v(gv)}, {v(sv)}")
        A(f"v_fmac_f32 {v(C+4)}, {v(sv)}, {v(sv)}")
    allreduce16(A, [C+i for i in range(5)])
    allreduce_rows(A, [C+i for i in range(5)], [SJ+i for i in range(5)])
    srd(A, 84, sWS, 64, WS_CONST)
    A(f"v_lshlrev_b32 {v(SJ+16)}, 6, {v(vLane)}")
    A(f"buffer_store_dwordx4 {v(C,4)}, {v(SJ+16)}, s[84:87], 0 offen {SC}")
    A(f"buffer_store_dword {v(C+4)}, {v(SJ+16)}, s[84:87], 0 offen offset:16 {SC}")
    A.label(f"{name}_sj1")

    def a_reads(ks):
        out = []
        for db in range(8):
            for j in range(2):
                off = ((ks >> 2) & 1) * 32768 + (ks & 3) * 8192 + j * 1024
                out.append(f"ds_read_b64_tr_b16 {a(KF(ks & 1, db) + 2*j, 2)}, {v(AW+db)} offset:{off}")
        return out
    def gs_reads(ks):
        b = GS + (ks & 1) * 16
        return [f"ds_read_b128 {v(b + 4*i, 4)}, {v(vGS)} offset:{(i >> 1) * 2048 + ks * 128 + (i & 1) * 16}" for i in range(4)]
    def modulate(ks):
        b = GS + (ks & 1) * 16
        out = []
        for qb in range(4):
            r = XR + (ks % 8) * 16 + qb * 4
            for j in range(4):
                x0, x1 = vT + 2*(j & 1), vT + 2*(j & 1) + 1
                out.append(f"v_fma_mix_f32 {v(x0)}, {v(r+j)}, {v(b+8+2*j)}, {v(b+2*j)} op_sel:[0,0,0] op_sel_hi:[1,0,0]")
                out.append(f"v_fma_mix_f32 {v(x1)}, {v(r+j)}, {v(b+8+2*j+1)}, {v(b+2*j+1)} op_sel:[1,0,0] op_sel_hi:[1,0,0]")
                out.append(f"v_cvt_pk_bf16_f32 {v(r+j)}, {v(x0)}, {v(x1)}")
        return out
    Q.wait("mod", "wq0")
    A("s_barrier")
    M.stamp(M.vtmp)
    for x in gs_reads(0) + gs_reads(1) + a_reads(0): A(x)
    Q.wait("xn0", extra="lgkmcnt(0)")
    for x in modulate(0): A(x)
    A.nop(2)
    def kv_dma(t, n):
        stage = t % 4
        txt = []
        if n == 0: txt.append(f"s_add_u32 m0, {s(sWb)}, {stage*32768}")
        if n == 4: txt.append(f"s_add_u32 m0, {s(sWb)}, {stage*32768 + 16384}")
        if n < 4: ld = f"buffer_load_dwordx4 {v(vKD+n)}, {s(sKs,4)}, {s(sTile)} offen offset:{1024*n} lds"
        else: ld = f"buffer_load_dwordx4 {v(vVD+((n-4)&1))}, {s(sVs,4)}, {s(sTile)} offen offset:{1024*(n-4)} lds"
        return txt, ld
    for ks in range(16):
        mf = []
        for db in range(8):
            for qb in range(4):
                d = Qacc(db, qb)
                cc = "0" if ks == 0 else a(d, 4)
                mf.append(f"v_mfma_f32_16x16x32_bf16 {a(d,4)}, {a(KF(ks & 1, db),4)}, {v(XR + (ks % 8)*16 + qb*4, 4)}, {cc}")
        gaps = [[] for _ in range(32)]
        pre = []
        if ks < 15:
            nxt = ks + 1
            if nxt % 4 == 0:
                pre.append(lambda c=nxt // 4: Q.wait(f"wq{c}"))
                pre.append("s_barrier")
                if nxt == 8:
                    pre += [f"v_add_u32 {v(AW+db)}, 0x10000, {v(AW+db)}" for db in range(8)]
            ds = a_reads(nxt) + (gs_reads(ks + 2) if ks + 2 < 16 else [])
            va = modulate(nxt)
            pre.append(lambda k=nxt: Q.wait(f"xn{k}"))
            for i in range(32):
                if i < len(ds): gaps[i].append(ds[i])
            cap = [1 if i < len(ds) else 2 for i in range(32)]
            extra = len(va) - sum(cap)
            i = 31
            while extra > 0:
                cap[i] += 1; extra -= 1; i -= 4
                if i < 0: i = 30
            k = 0
            for i in range(32):
                for _ in range(cap[i]):
                    if k < len(va): gaps[i].append(va[k]); k += 1
            assert k == len(va)
            if ks + 6 < 16:
                for qb in range(4):
                    gaps[3 + 8*qb].append(lambda k=ks + 6, q=qb: xn_load(k, q))
        if ks < 4:
            for m in (2*ks, 2*ks + 1):
                gaps[7 + 16*(m & 1)].append(lambda m=m: wq_dma(3, m))
        if ks >= 8:
            t = (ks - 8) // 4
            for n2 in range(2):
                n = ((ks - 8) % 4) * 2 + n2
                def emit(t=t, n=n):
                    txt, ld = kv_dma(t, n)
                    if n == 0: A(f"s_mov_b32 {s(sTile)}, {t*16384}")
                    if n == 0 and t == 0: A(f"s_lshl_b32 {s(sWb)}, {s(sW)}, 12")
                    for x in txt: A(x)
                    A("s_nop 0")
                    Q.issue(ld, f"kv{t}")
                gaps[5 + 16*n2].append(emit)
        if M.fine == 'proj' and ks % 2 == 0 and ks: M.stamp(M.vtmp, f"step{ks}")
        for f in pre:
            f() if callable(f) else A(f)
        interleave(A, mf, gaps)
        if ks < 15:
            A("s_waitcnt lgkmcnt(0)")
            A.nop(1)
    M.stamp(M.vtmp)
    Q.wait("kv0", "kv1")
    A(f"s_cmp_eq_u32 {s(sSide)}, 0")
    A(f"s_cbranch_scc1 {name}_sj2")
    A(f"v_mov_b32 {v(92)}, 0")
    A(f"v_mov_b32 {v(93)}, 1")
    A(f"s_mov_b32 {s(sTmp)}, {F_SIDE*128}")
    A("s_mov_b64 exec, 1")
    A(f"buffer_atomic_add {v(93)}, {v(92)}, {s(sFL,4)}, {s(sTmp)} offen sc1")
    A("s_mov_b64 exec, -1")
    A.label(f"{name}_sj2")
    A("s_barrier")
    if M.fine == "proj": M.stamp(M.vtmp, "kvlanded")
    A(f"s_mov_b32 {s(sTile)}, {2*16384}")
    for n in range(5):
        txt, ld = kv_dma(2, n)
        for x in txt: A(x)
        A("s_nop 0")
        A(ld)
    def k_read(G, f):
        t = (G >> 1) % 4; kb, ks = f >> 2, f & 3
        off = (t & 1) * 32768 + (G & 1) * 8192 + kb * 4096
        return f"ds_read_b128 {a(KF(G & 1, f),4)}, {v(KAd(ks, t >> 1))} offset:{off}"
    def v_read(G, db, j):
        t = (G >> 1) % 4
        off = (t & 1) * 32768 + 16384 + (G & 1) * 8192 + j * 4096
        return f"ds_read_b64_tr_b16 {a(VF(G & 1, db) + 2*j, 2)}, {v(VAd(db, t >> 1))} offset:{off}"
    def qk(G, qb, dst, c):
        out = []
        for kb in range(2):
            for ks in range(4):
                d = dst + 4*kb
                cc = (c if c == "0" else v(c, 4)) if ks == 0 else v(d, 4)
                out.append(f"v_mfma_f32_16x16x32_bf16 {v(d,4)}, {a(KF(G & 1, kb*4+ks),4)}, {a(Qf(qb,ks),4)}, {cc}")
        return out
    for f in range(8): A(k_read(0, f))
    for qb in range(4):
        for ks in range(4):
            x0, x1 = Qacc(2*ks, qb), Qacc(2*ks+1, qb)
            t = TM + (ks & 1) * 12
            for r in range(4):
                A(f"v_accvgpr_read_b32 {v(t+4+r)}, {a(x0+r)}")
            for r in range(4):
                A(f"v_accvgpr_read_b32 {v(t+8+r)}, {a(x1+r)}")
            A(f"v_cvt_pk_bf16_f32 {v(t)}, {v(t+4)}, {v(t+5)}")
            A(f"v_cvt_pk_bf16_f32 {v(t+1)}, {v(t+6)}, {v(t+7)}")
            A(f"v_cvt_pk_bf16_f32 {v(t+2)}, {v(t+8)}, {v(t+9)}")
            A(f"v_cvt_pk_bf16_f32 {v(t+3)}, {v(t+10)}, {v(t+11)}")
            z = O0 + (qb*4 + ks) * 8
            A(f"v_pk_mov_b32 {v(z,2)}, 0, 0")
            A(f"v_pk_mov_b32 {v(z+2,2)}, 0, 0")
            A(f"v_permlane16_swap_b32 {v(t)}, {v(t+2)}")
            A(f"v_permlane16_swap_b32 {v(t+1)}, {v(t+3)}")
            A(f"v_pk_mov_b32 {v(z+4,2)}, 0, 0")
            A(f"v_pk_mov_b32 {v(z+6,2)}, 0, 0")
            for r in range(4):
                A(f"v_accvgpr_write_b32 {a(Qf(qb,ks)+r)}, {v(t+r)}")
    if M.fine == "proj": M.stamp(4, "packed")
    for r in range(0, 16, 2):
        A(f"v_pk_mov_b32 {v(Lacc(0)+r,2)}, 0, 0")
    for r in range(0, 4, 2):
        A(f"v_pk_mov_b32 {v(Pb(1)+r,2)}, 0, 0")
    for db in range(8):
        for j in range(2): A(v_read(1, db, j))
    A("s_waitcnt lgkmcnt(0)")
    for qb in range(4):
        for m in qk(0, qb, TM + 8*qb, "0"): A(m)
    for x in [k_read(1, 0), k_read(1, 1)]: A(x)
    for db in range(6):
        for j in range(2): A(v_read(0, db, j))
    mx = [Sb(0) + qb for qb in range(4)]
    for o in ((0, 1, 2), (3, 4), (5, 6)):
        for qb in range(4):
            b = TM + 8*qb
            if len(o) == 3: A(f"v_max3_f32 {v(mx[qb])}, {v(b+o[0])}, {v(b+o[1])}, {v(b+o[2])}")
            else: A(f"v_max3_f32 {v(mx[qb])}, {v(mx[qb])}, {v(b+o[0])}, {v(b+o[1])}")
    for qb in range(4):
        A(f"v_max_f32 {v(mx[qb])}, {v(mx[qb])}, {v(TM + 8*qb + 7)}")
    allreduce_rows(A, mx, [Sb(0) + 4 + qb for qb in range(4)], op="v_max_f32")
    for qb in range(4):
        for r in range(4):
            A(f"v_sub_f32 {v(NM(qb)+r)}, 0, {v(mx[qb])}")
    sPF, sPFo = 92, 46
    vPF, vPFd = 120, 116
    if prefetch:
        A(f"s_lshl_b32 {s(sPFo)}, s{sWG}, 2")
        A(f"s_add_u32 {s(sPFo)}, {s(sPFo)}, {s(sW)}")
        A(f"s_cmp_lt_u32 {s(sPFo)}, 512")
        A(f"s_cselect_b32 {s(sPF)}, s56, s58")
        A(f"s_cselect_b32 {s(sPF+1)}, s57, s59")
        A(f"s_and_b32 {s(sPF+1)}, {s(sPF+1)}, 0xffff")
        A(f"s_mov_b32 {s(sPF+2)}, {512*1024}")
        A(f"s_mov_b32 {s(sPF+3)}, 0x20000")
        A(f"s_and_b32 {s(sTmp)}, {s(sPFo)}, 511")
        A(f"s_lshl_b32 {s(sTmp)}, {s(sTmp)}, 10")
        A(f"v_lshlrev_b32 {v(vPF)}, 4, {v(vLane)}")
        A(f"s_lshl_b32 {s(sPFo)}, {s(sPFo)}, 10")
        A(f"v_add_u32 {v(vPF+1)}, {s(sTmp)}, {v(vPF)}")
        A(f"buffer_load_dwordx4 {v(vPFd,4)}, {v(vPF+1)}, {s(sPF,4)}, 0 offen")
    A.nop(2)
    for m in qk(0, 0, Sb(0), NM(0)): A(m)
    A("s_waitcnt lgkmcnt(0)")
    M.stamp(M.vtmp)
    A(f"s_mov_b32 {s(sIter)}, 8")
    A(f"s_mov_b32 {s(sXo+0)}, {1792*1024}")
    A.nop(6)
    A.raw(".p2align 6")
    A.label(f"{name}_loop")
    for tt in range(4):
        for ls in range(8):
            kg, p = ls >> 2, ls & 3
            G = 2*tt + kg
            j = 8*tt + ls
            Gn, qn = (G, p + 1) if p < 3 else (G + 1, 0)
            Gp, qp = (G, p - 1) if p > 0 else (G - 1, 3)
            mf = qk(Gn, qn, Sb((j + 1) & 1), NM(qn))
            for db in range(8):
                d = Oacc(db, qp)
                mf.append(f"v_mfma_f32_16x16x32_bf16 {v(d,4)}, {a(VF(Gp & 1, db),4)}, {v(Pb((j-1) & 1),4)}, {v(d,4)}")
            d = Lacc(qp)
            mf.append(f"v_mfma_f32_16x16x32_bf16 {v(d,4)}, {v(ONES,4)}, {v(Pb((j-1) & 1),4)}, {v(d,4)}")
            sb, pb = Sb(j & 1), Pb(j & 1)
            E = [f"v_exp_f32 {v(sb+i)}, {v(sb+i)}" for i in range(8)]
            C = [f"v_cvt_pk_bf16_f32 {v(pb+i)}, {v(sb+2*i)}, {v(sb+2*i+1)}" for i in range(4)]
            if p == 3: kr = [k_read(G + 2, 0), k_read(G + 2, 1)]
            else: kr = [k_read(G + 1, 2 + 2*p), k_read(G + 1, 3 + 2*p)]
            if p == 0: vr = [v_read(G, db, jj) for db in (6, 7) for jj in range(2)]
            else: vr = [v_read(G + 1, db, jj) for db in (2*(p-1), 2*(p-1) + 1) for jj in range(2)]
            DS = kr + vr
            if ls >= 3: T, n = tt + 3, ls - 3
            else: T, n = tt + 2, ls + 5
            txt, ld = kv_dma(T, n)
            gaps = [[] for _ in range(17)]
            for i in range(8): gaps[2*i].append(E[i])
            for i in range(6): gaps[2*i + 1].append(DS[i])
            gaps[3].append(C[0]); gaps[7].append(C[1]); gaps[11].append(C[2]); gaps[15].append(C[3])
            for x in txt: gaps[9].append(x)
            gaps[13].append(ld)
            if p == 1: gaps[5].append("s_waitcnt lgkmcnt(3)")
            if prefetch and tt == 0 and ls == 0:
                gaps[1].append(f"s_cmp_gt_u32 {s(sIter)}, 4")
                gaps[3].append(f"s_cselect_b32 {s(sPF)}, s54, s60")
                gaps[5].append(f"s_cselect_b32 {s(sPF+1)}, s55, s61")
                gaps[7].append(f"s_cselect_b32 {s(sPF+2)}, {4096*1024}, {s(sXo+0)}")
                gaps[9].append(f"s_cmp_le_u32 {s(sIter)}, 2")
                gaps[11].append(f"s_cselect_b32 {s(sPF)}, s62, {s(sPF)}")
                gaps[15].append(f"s_cselect_b32 {s(sPF+1)}, s63, {s(sPF+1)}")
            if prefetch and tt == 0 and ls == 1:
                gaps[1].append(f"s_and_b32 {s(sPF+1)}, {s(sPF+1)}, 0xffff")
                gaps[3].append(f"s_sub_u32 {s(sXo+1)}, 8, {s(sIter)}")
                gaps[7].append(f"s_cmp_lt_u32 {s(sXo+1)}, 4")
                gaps[9].append(f"s_cselect_b32 {s(sXo+2)}, 3, 1")
                gaps[11].append(f"s_and_b32 {s(sXo+1)}, {s(sXo+1)}, {s(sXo+2)}")
                gaps[15].append(f"s_lshl_b32 {s(sXo+1)}, {s(sXo+1)}, 20")
                gaps[16].append(f"s_add_u32 {s(sXo+1)}, {s(sXo+1)}, {s(sPFo)}")
            if prefetch and tt == 0 and ls == 2:
                gaps[5].append(f"v_add_u32 {v(vPF+1)}, {s(sXo+1)}, {v(vPF)}")
                gaps[15].append(f"buffer_load_dwordx4 {v(vPFd,4)}, {v(vPF+1)}, {s(sPF,4)}, 0 offen")
            if ls == 2:
                nv_ = 9 if (prefetch and tt in (0, 1)) else 8
                gaps[15].append(f"s_add_u32 {s(sTile)}, {s(sTile)}, 16384")
                gaps[16] += [f"s_waitcnt vmcnt({nv_}) lgkmcnt(4)", "s_barrier", f"s_min_u32 {s(sTile)}, {s(sTile)}, {31*16384}"]
            elif p == 2:
                gaps[16].append("s_waitcnt lgkmcnt(4)")
            if tt == 3 and ls == 7:
                gaps[1].append(f"s_sub_u32 {s(sIter)}, {s(sIter)}, 1")
                gaps[16] += [f"s_cmp_lg_u32 {s(sIter)}, 0", f"s_cbranch_scc1 {name}_loop"]
            interleave(A, mf, gaps)
    A.nop(1)
    for db in range(8):
        d = Oacc(db, 3)
        A(f"v_mfma_f32_16x16x32_bf16 {v(d,4)}, {a(VF(1, db),4)}, {v(Pb(1),4)}, {v(d,4)}")
    A(f"v_mfma_f32_16x16x32_bf16 {v(Lacc(3),4)}, {v(ONES,4)}, {v(Pb(1),4)}, {v(Lacc(3),4)}")
    Q.q = []
    A("s_waitcnt vmcnt(0) lgkmcnt(0)")
    A("s_barrier")
    M.stamp(M.vtmp)
    A(f"s_lshl_b32 s47, {s(sQblk)}, 3")
    A(f"s_lshr_b32 s46, {s(sHead)}, 2")
    A("s_add_u32 s47, s47, s46")
    flag_off(A, 47, F_O, 47)
    A(f"s_lshl_b32 s46, {s(sRb)}, 17")
    A(f"s_lshl_b32 {s(sTmp2)}, {s(sHead)}, 12")
    A(f"s_add_u32 s46, s46, {s(sTmp2)}")
    vA, vR, vP = 46, 48, 56
    A(f"v_lshlrev_b32 {v(vA)}, 4, {v(vLane)}")
    for qb in range(4):
        A(f"v_rcp_f32 {v(vR+2*qb)}, {v(Lacc(qb))}")
    A.nop(1)
    for qb in range(4):
        for m in range(4):
            x0, x1 = Oacc(2*m, qb), Oacc(2*m+1, qb)
            t = vP + ((qb*4 + m) % 4) * 4
            for x in (x0, x0+2, x1, x1+2):
                A(f"v_pk_mul_f32 {v(x,2)}, {v(x,2)}, {v(vR+2*qb,2)} op_sel_hi:[1,0]")
            A(f"v_cvt_pk_bf16_f32 {v(t)}, {v(x0)}, {v(x0+1)}")
            A(f"v_cvt_pk_bf16_f32 {v(t+1)}, {v(x0+2)}, {v(x0+3)}")
            A(f"v_cvt_pk_bf16_f32 {v(t+2)}, {v(x1)}, {v(x1+1)}")
            A(f"v_cvt_pk_bf16_f32 {v(t+3)}, {v(x1+2)}, {v(x1+3)}")
            Q.issue(f"buffer_store_dwordx4 {v(t,4)}, {v(vA)}, s[{sOs}:{sOs+3}], s46 offen offset:{1024*m} {SC}", "st")
        if qb < 3:
            A("s_add_u32 s46, s46, 131072")
    M.signal_wave(47, 32, "st")
    next_pre()


vG, vRow, vFr, vCol = 230, 231, 232, 233
MU1, R1, X2P, X1P = 238, 239, 240, 248
GT = 224
sRg, sCb, sRb, sCol = 35, 36, 37, 38
sWs = 12

def w_srd(A, ka_off, size):
    kptr(A, 6, ka_off)
    A("s_waitcnt lgkmcnt(0)")
    srd(A, sWs, 6, size)

class T1:
    def __init__(self, M):
        self.M = M
        self.G = GemmK(M, nks=32, pitch=1024)
    def pre(self):
        M = self.M; A = M.A
        A(f"s_and_b32 s33, s{sWG}, 7")
        A("s_lshl_b32 s33, s33, 2")
        A(f"s_lshr_b32 s34, s{sWG}, 3")
        A("s_and_b32 s34, s34, 3")
        A(f"s_add_u32 {s(sRg)}, s33, s34")
        A(f"s_lshr_b32 {s(sCb)}, s{sWG}, 5")
        if os.environ.get("CBX"): A(f"s_xor_b32 {s(sCb)}, {s(sCb)}, {os.environ['CBX']}")
        A(f"s_lshl_b32 {s(sRb)}, {s(sRg)}, 2")
        A(f"s_add_u32 {s(sRb)}, {s(sRb)}, s{sWV}")
        A(f"s_lshl_b32 {s(sCol)}, {s(sCb)}, 7")
        w_srd(A, KA_WO, 4096*1024)
        self.G.setup(sCol, sWs, vWD=4, vTR=8, tmp=40, sM0=48, sSo=49, sT=50)
    def body(self, next_pre):
        M = self.M; A, Q, G = M.A, M.Q, self.G
        M.vtmp = 236
        A(f"s_lshr_b32 s51, {s(sRg)}, 2")
        A("s_lshl_b32 s51, s51, 3")
        A(f"s_lshl_b32 s53, s{sWV}, 1")
        A("s_add_u32 s51, s51, s53")
        flag_off(A, 53, F_O, 51)
        A("s_add_u32 s54, s53, 128")
        kptr(A, 8, KA_X)
        sAs, sXs, sMs, sXG, sST = 16, 20, 24, 28, 40
        srd(A, sAs, sWS, 2048*8192, WS_O)
        srd(A, sMs, sWS, 3072*4, WS_MOD)
        srd(A, sXG, sWS, 2048*1024, WS_XG)
        srd(A, sST, sWS, 2048*256, WS_ST1)
        A("s_waitcnt lgkmcnt(0)")
        srd(A, sXs, 8, 2048*1024)
        vActs, vXo = 12, 19
        A(f"v_lshrrev_b32 {v(vG)}, 4, v1")
        A(f"v_and_b32 {v(vRow)}, 15, v1")
        A(f"v_lshlrev_b32 {v(vFr)}, 4, v1")
        for jj in range(4):
            A(f"s_xor_b32 s51, s{sWV}, {jj}")
            A(f"s_lshl_b32 s55, {s(sRg)}, 2")
            A("s_add_u32 s51, s51, s55")
            A("s_lshl_b32 s51, s51, 17")
            A(f"v_add_u32 {v(vActs+jj)}, s51, {v(vFr)}")
        A(f"s_lshl_b32 s51, {s(sCb)}, 8")
        A(f"v_lshlrev_b32 {v(vCol)}, 4, {v(vG)}")
        A(f"v_add_u32 {v(vCol)}, s51, {v(vCol)}")
        A(f"s_lshl_b32 s51, {s(sRb)}, 14")
        A(f"v_lshlrev_b32 {v(vXo)}, 10, {v(vRow)}")
        A(f"v_add_u32 {v(vXo)}, s51, {v(vXo)}")
        A(f"v_lshrrev_b32 v20, 1, {v(vCol)}")
        A(f"v_add_u32 {v(vXo)}, {v(vXo)}, v20")
        XT, GA, G2, SB, ACC = 40, 48, 64, 80, 160
        A(f"v_add_u32 v20, {2*2048}, {v(vCol)}")
        A(f"v_add_u32 v21, {3*2048}, {v(vCol)}")
        A(f"v_add_u32 v22, {4*2048}, {v(vCol)}")
        def epi_loads():
            for nb in range(4):
                Q.issue(f"buffer_load_dwordx2 {v(XT+2*nb,2)}, {v(vXo)}, {s(sXs,4)}, 0 offen offset:{32*nb}", "epi")
            col_loads(Q, GA, 20, sMs, 4, "epi")
            col_loads(Q, SB, 21, sMs, 4, "epi")
            col_loads(Q, G2, 22, sMs, 4, "epi")
        M.stamp(M.vtmp)
        sG0, sG1, sF1 = 56, 57, 58
        lp, lq = M.lab("o"), M.lab("o")
        vP = 28
        M.vpoll_issue([(53, 16), (54, 16)], vP, track=False)
        A("s_mov_b64 exec, 3")
        A(f"s_mov_b32 s3, {SPIN_LIMIT}")
        A("s_waitcnt vmcnt(0)")
        A.label(lp)
        A(f"v_cmp_ge_u32 vcc, {v(vP+2)}, {v(vP+1)}")
        A("s_sub_u32 s3, s3, 1")
        A("s_cmp_eq_u32 s3, 0")
        A(f"s_cbranch_scc1 {lq}")
        A("s_cmp_lg_u64 vcc, 0")
        A(f"s_cbranch_scc1 {lq}")
        A(f"s_sleep {SLEEP_O}")
        A(f"buffer_load_dword {v(vP+2)}, {v(vP)}, {s(sFL,4)}, 0 offen sc1")
        A("s_waitcnt vmcnt(0)")
        A(f"s_branch {lp}")
        A.label(lq)
        A("s_mov_b64 exec, -1")
        Q.q = []
        A(f"s_lshl_b32 s62, s{sWV}, 5")
        A("s_add_u32 s63, s62, 16")
        A("s_bitcmp1_b32 vcc_lo, 0")
        A(f"s_cselect_b32 {s(sG0)}, s62, s63")
        A(f"s_cselect_b32 {s(sG1)}, s63, s62")
        A(f"s_cselect_b32 {s(sF1)}, s54, s53")
        A(f"s_lshl_b32 s62, {s(sG0)}, 15")
        A(f"s_lshl_b32 s63, {s(sG0)}, 10")
        def look():
            M.vpoll_issue([(sF1, 16)], vP)
        def second():
            n = Q.count_for(["poll"])
            M.vpoll_loop([(sF1, 16)], vP, SLEEP_SPIN, first_wait=(63 if n is None else n))
            A(f"s_lshl_b32 s62, {s(sG1)}, 15")
            A(f"s_lshl_b32 s63, {s(sG1)}, 10")
        def wso(ks):
            A(f"s_add_u32 s49, s62, {(ks & 15) * 32768}")
        st_ = [None]
        def act_load(ks, jj):
            if jj == 0 and (ks & 3) == 0 or st_[0] is None:
                A(f"s_add_u32 s52, s63, {((ks & 15) >> 2) * 4096}")
                st_[0] = 1
            if os.environ.get("T1X") == "noact": return
            Q.issue(f"buffer_load_dwordx4 {a(G.AF(ks, jj),4)}, {v(vActs+jj)}, {s(sAs,4)}, s52 offen offset:{(ks & 3)*1024} {SC}", f"k{ks}")
        def side_check():
            A(f"s_mov_b32 s59, {F_SIDE*128}")
            M.spin(59, 17, vt=28)
        acc = lambda jj, nb: ACC + (jj*4 + nb)*4
        G.run(wso, act_load, acc, gate={10: look, 16: second}, late={26: epi_loads})
        M.stamp(M.vtmp)
        G.reduce(acc, 24)
        side_check()
        Q.wait("epi")
        X = 96
        unpack(A, X, XT, 8)
        for i in range(0, 16, 2):
            A(f"v_pk_fma_f32 {v(X+i,2)}, {v(GA+i,2)}, {v(ACC+i,2)}, {v(X+i,2)}")
        for i in range(8): A(f"v_cvt_pk_bf16_f32 {v(X2P+i)}, {v(X+2*i)}, {v(X+2*i+1)}")
        unpack(A, X, X2P, 8)
        XG, PG = 120, 136
        for i in range(0, 16, 2): A(f"v_pk_mul_f32 {v(XG+i,2)}, {v(X+i,2)}, {v(G2+i,2)}")
        for i in range(8): A(f"v_cvt_pk_bf16_f32 {v(PG+i)}, {v(XG+2*i)}, {v(XG+2*i+1)}")
        A(f"s_lshl_b32 s51, {s(sRb)}, 14")
        A(f"s_lshl_b32 s53, {s(sCb)}, 11")
        A("s_add_u32 s51, s51, s53")
        for m in range(2):
            Q.issue(f"buffer_store_dwordx4 {v(PG+4*m,4)}, {v(vFr)}, {s(sXG,4)}, s51 offen offset:{1024*m} {SC}", "st")
        P = 144
        pairs = [(P + 2*i) for i in range(6)]
        A(f"v_pk_add_f32 {v(pairs[0],2)}, {v(X,2)}, {v(X+2,2)}")
        A(f"v_pk_mul_f32 {v(pairs[1],2)}, {v(X,2)}, {v(X,2)}")
        A(f"v_pk_add_f32 {v(pairs[2],2)}, {v(XG,2)}, {v(XG+2,2)}")
        A(f"v_pk_mul_f32 {v(pairs[3],2)}, {v(XG,2)}, {v(XG,2)}")
        A(f"v_pk_mul_f32 {v(pairs[4],2)}, {v(XG,2)}, {v(G2,2)}")
        A(f"v_pk_mul_f32 {v(pairs[5],2)}, {v(XG,2)}, {v(SB,2)}")
        for i in range(2, 16, 2):
            if i >= 4:
                A(f"v_pk_add_f32 {v(pairs[0],2)}, {v(pairs[0],2)}, {v(X+i,2)}")
                A(f"v_pk_add_f32 {v(pairs[2],2)}, {v(pairs[2],2)}, {v(XG+i,2)}")
            A(f"v_pk_fma_f32 {v(pairs[1],2)}, {v(X+i,2)}, {v(X+i,2)}, {v(pairs[1],2)}")
            A(f"v_pk_fma_f32 {v(pairs[3],2)}, {v(XG+i,2)}, {v(XG+i,2)}, {v(pairs[3],2)}")
            A(f"v_pk_fma_f32 {v(pairs[4],2)}, {v(XG+i,2)}, {v(G2+i,2)}, {v(pairs[4],2)}")
            A(f"v_pk_fma_f32 {v(pairs[5],2)}, {v(XG+i,2)}, {v(SB+i,2)}, {v(pairs[5],2)}")
        S6 = 176
        for i in range(6): A(f"v_add_f32 {v(S6+i)}, {v(pairs[i])}, {v(pairs[i]+1)}")
        allreduce_rows(A, [S6+i for i in range(6)], [S6+8+i for i in range(6)])
        A(f"v_mov_b32 {v(S6+6)}, 0")
        A(f"v_mov_b32 {v(S6+7)}, 0")
        A(f"s_lshl_b32 s51, {s(sRb)}, 12")
        A(f"s_lshl_b32 s53, {s(sCb)}, 5")
        A("s_add_u32 s51, s51, s53")
        A(f"v_lshlrev_b32 v14, 8, {v(vRow)}")
        A("s_mov_b64 exec, 0xffff")
        Q.issue(f"buffer_store_dwordx4 {v(S6,4)}, v14, {s(sST,4)}, s51 offen {SC}", "st")
        Q.issue(f"buffer_store_dwordx4 {v(S6+4,4)}, v14, {s(sST,4)}, s51 offen offset:16 {SC}", "st")
        A("s_mov_b64 exec, -1")
        flag_off(A, 47, F_1, sRg)
        M.signal(47, 20, "st")
        next_pre()
        M.stamp(M.vtmp)

class T2:
    def __init__(self, M):
        self.M = M
        self.G = Gemm(M, NB=4, RB=1, nks=16, CK=4, RD=4, pitch=1024)
    def pre(self):
        M = self.M; A = M.A; G = self.G
        w_srd(A, KA_W1, 512*1024)
        G.setup(sCol, sWs, vWD=3, vTR=4, tmp=GT, sM0=48, sSo=49, sT=50)
        A(f"v_xor_b32 {v(GT+2)}, s{sWV}, {v(G.tf)}")
        A(f"v_lshl_add_u32 v8, {v(GT+2)}, 5, {v(G.tb)}")
        G.issue_weights()
    def body(self, next_pre):
        M = self.M; A, Q, G = M.A, M.Q, self.G
        flag_off(A, 53, F_1, sRg)
        M.poll_begin([(53, 8)])
        sAs, sEs, sST, sH = 16, 20, 24, 28
        srd(A, sAs, sWS, 2048*1024, WS_XG)
        srd(A, sEs, sWS, 16384, WS_EB)
        srd(A, sST, sWS, 2048*256, WS_ST1)
        srd(A, sH, sWS, 2048*1024, WS_H1)
        srd(A, 40, sWS, 64, WS_CONST)
        vTE, ACC, VE, vAct, vSt = 8, 24, 40, 18, 19
        A(f"s_lshl_b32 s51, {s(sRb)}, 14")
        A(f"v_add_u32 {v(vAct)}, s51, {v(vFr)}")
        A(f"s_lshl_b32 s51, {s(sRb)}, 12")
        A(f"v_lshlrev_b32 {v(vSt)}, 8, {v(vRow)}")
        A(f"v_lshl_add_u32 {v(vSt)}, {v(vG)}, 6, {v(vSt)}")
        A(f"v_add_u32 {v(vSt)}, s51, {v(vSt)}")
        A("v_mov_b32 v14, 0")
        EF = lambda ks: 112 + 4*ks
        WE = lambda ks: 176 + 4*ks
        ST, CN = 44, 60
        for ks in range(16):
            if ks % 4 == 0: A(f"s_mov_b32 s52, {(ks >> 2) * 4096}")
            Q.issue(f"buffer_load_dwordx4 {a(EF(ks),4)}, {v(vFr)}, {s(sEs,4)}, s52 offen offset:{(ks & 3)*1024} {SC}", "eb")
        Q.issue(f"buffer_load_dwordx4 {v(CN,4)}, v14, s[40:43], 0 offen {SC}", "eb")
        Q.issue(f"buffer_load_dword {v(CN+4)}, v14, s[40:43], 0 offen offset:16 {SC}", "eb")
        Q.wait("eb", "w3")
        A("s_barrier")
        for ks in range(16):
            for jj in range(2):
                A(f"ds_read_b64_tr_b16 {a(WE(ks) + 2*jj, 2)}, {v(vTE)} offset:{G.lds_off(ks) + jj*16*G.rowb}")
        A("s_waitcnt lgkmcnt(0)")
        for ks in range(16):
            cc = "0" if ks == 0 else v(VE, 4)
            A(f"v_mfma_f32_16x16x32_bf16 {v(VE,4)}, {a(WE(ks),4)}, {a(EF(ks),4)}, {cc}")
        LV = LDS_MISC
        A(f"v_lshlrev_b32 v15, 8, {v(vRow)}")
        A(f"v_lshl_add_u32 v15, {v(vG)}, 4, v15")
        A(f"s_lshl_b32 s51, s{sWV}, 6")
        A(f"s_add_u32 s51, s51, {LV}")
        A("v_add_u32 v15, s51, v15")
        A(f"v_cmp_gt_u32 vcc, 3, {v(vRow)}")
        A.nop(4)
        A("s_and_saveexec_b64 s[54:55], vcc")
        A(f"ds_write_b128 v15, {v(VE,4)}")
        A("s_mov_b64 exec, s[54:55]")
        A("s_waitcnt lgkmcnt(0)")
        A("s_barrier")
        V1, V2, V3 = 80, 96, 112
        A(f"v_lshlrev_b32 v15, 4, {v(vG)}")
        A(f"v_add_u32 v15, {LV}, v15")
        for jj, b_ in enumerate((V1, V2, V3)):
            for nb in range(4):
                A(f"ds_read_b128 {v(b_+4*nb,4)}, v15 offset:{256*jj + 64*nb}")
        gelu_consts(A, 56, 142)
        A("s_waitcnt lgkmcnt(0)")
        M.stamp(M.vtmp)
        M.poll_end()
        R, BI = 136, 176
        def first():
            for i in range(4):
                Q.issue(f"buffer_load_dwordx4 {v(ST+4*i,4)}, {v(vSt)}, {s(sST,4)}, 0 offen offset:{16*i} {SC}", "epi")
        def overlap():
            Q.wait("epi")
            P = 66
            for i in range(6):
                A(f"v_add_f32 {v(P+i)}, {v(ST+i)}, {v(ST+8+i)}")
            allreduce_rows(A, [P+i for i in range(6)], [P+8+i for i in range(6)])
            inv = f32hex(1/512)
            G1, S1, G2c, GS, S2 = CN, CN+1, CN+2, CN+3, CN+4
            mu, r1, m2, e2, t0, t1 = MU1, R1, 130, 131, 132, 133
            r2, cB, cC = 134, 138, 140
            A(f"v_mul_f32 {v(mu)}, {inv}, {v(P)}")
            A(f"v_mul_f32 {v(t0)}, {inv}, {v(P+1)}")
            A(f"v_fma_f32 {v(t0)}, -{v(mu)}, {v(mu)}, {v(t0)}")
            A(f"v_max_f32 {v(t0)}, 0, {v(t0)}")
            A(f"v_add_f32 {v(t0)}, {f32hex(1e-5)}, {v(t0)}")
            A(f"v_rsq_f32 {v(r1)}, {v(t0)}")
            A(f"v_fma_f32 {v(t0)}, -{v(mu)}, {v(G1)}, {v(P+2)}")
            A(f"v_fma_f32 {v(t0)}, {v(t0)}, {v(r1)}, {v(S1)}")
            A(f"v_mul_f32 {v(m2)}, {inv}, {v(t0)}")
            A(f"v_mul_f32 {v(t0)}, {v(G2c)}, {v(mu)}")
            A(f"v_fma_f32 {v(t0)}, -2.0, {v(P+4)}, {v(t0)}")
            A(f"v_fma_f32 {v(t0)}, {v(t0)}, {v(mu)}, {v(P+3)}")
            A(f"v_mul_f32 {v(t0)}, {v(t0)}, {v(r1)}")
            A(f"v_fma_f32 {v(t1)}, -{v(mu)}, {v(GS)}, {v(P+5)}")
            A(f"v_fma_f32 {v(t0)}, 2.0, {v(t1)}, {v(t0)}")
            A(f"v_fma_f32 {v(t0)}, {v(t0)}, {v(r1)}, {v(S2)}")
            A(f"v_mul_f32 {v(e2)}, {inv}, {v(t0)}")
            A(f"v_fma_f32 {v(t0)}, -{v(m2)}, {v(m2)}, {v(e2)}")
            A(f"v_max_f32 {v(t0)}, 0, {v(t0)}")
            A(f"v_add_f32 {v(t0)}, {f32hex(1e-5)}, {v(t0)}")
            A(f"v_rsq_f32 {v(r2)}, {v(t0)}")
            A("s_nop 0")
            A(f"v_mul_f32 {v(R)}, {v(r1)}, {v(r2)}")
            A(f"v_mul_f32 {v(cB)}, -{v(m2)}, {v(r2)}")
            A(f"v_mul_f32 {v(cC)}, -{v(mu)}, {v(R)}")
            for i in range(0, 16, 2):
                A(f"v_pk_mul_f32 {v(BI+i,2)}, {v(V1+i,2)}, {v(r2,2)} op_sel_hi:[1,0]")
                A(f"v_pk_fma_f32 {v(BI+i,2)}, {v(V2+i,2)}, {v(cB,2)}, {v(BI+i,2)} op_sel_hi:[1,0,1]")
                A(f"v_pk_fma_f32 {v(BI+i,2)}, {v(V3+i,2)}, {v(cC,2)}, {v(BI+i,2)} op_sel_hi:[1,0,1]")
        G.run(act_loader(M, G, vAct, sAs), lambda rb, nb: ACC + 4*nb, first=first, overlap=overlap)
        M.stamp(M.vtmp)
        A.nop(6)
        for i in range(0, 16, 2):
            A(f"v_pk_fma_f32 {v(ACC+i,2)}, {v(ACC+i,2)}, {v(R,2)}, {v(BI+i,2)} op_sel_hi:[1,0,1]")
        gelu_pk(A, [ACC+i for i in range(16)], [144+i for i in range(16)], 56, 142)
        PK = 160
        for i in range(8): A(f"v_cvt_pk_bf16_f32 {v(PK+i)}, {v(ACC+2*i)}, {v(ACC+2*i+1)}")
        A(f"s_lshl_b32 s51, {s(sRb)}, 14")
        A(f"s_lshl_b32 s53, {s(sCb)}, 11")
        A("s_add_u32 s51, s51, s53")
        for m in range(2):
            Q.issue(f"buffer_store_dwordx4 {v(PK+4*m,4)}, {v(vFr)}, {s(sH,4)}, s51 offen offset:{1024*m} {SC}", "st")
        flag_off(A, 47, F_2, sRg)
        M.signal(47, 20, "st")
        next_pre()
        M.stamp(M.vtmp)

class T3:
    def __init__(self, M):
        self.M = M
        self.G = Gemm(M, NB=4, RB=1, nks=16, CK=4, RD=4, pitch=1024)
    def pre(self):
        A = self.M.A
        w_srd(A, KA_W2, 512*1024)
        self.G.setup(sCol, sWs, vWD=3, vTR=4, tmp=GT, sM0=48, sSo=49, sT=50)
        self.G.issue_weights('early')
    def body(self, next_pre):
        M = self.M; A, Q, G = M.A, M.Q, self.G
        flag_off(A, 53, F_2, sRg)
        A(f"s_max_u32 s51, {s(sRg)}, 1")
        A("s_sub_u32 s51, s51, 1")
        flag_off(A, 54, F_2, 51)
        A(f"s_add_u32 s51, {s(sRg)}, 1")
        A("s_min_u32 s51, s51, 31")
        flag_off(A, 55, F_2, 51)
        M.poll_begin([(53, 8), (54, 8), (55, 8)])
        sAs, sMs, sX1, sS2 = 16, 20, 24, 28
        srd(A, sAs, sWS, 2048*1024, WS_H1)
        srd(A, sMs, sWS, 3072*4, WS_MOD)
        srd(A, sX1, sWS, 2048*1024, WS_X1)
        srd(A, sS2, sWS, 2048*64, WS_ST2)
        ACC, vSh = 24, 40
        A(f"s_lshl_b32 s51, {s(sRb)}, 4")
        A(f"v_add_u32 v14, s51, {v(vRow)}")
        for i, dl in enumerate((-1, 1, -2, 2)):
            A(f"v_add_u32 v15, {dl}, v14")
            A("v_lshrrev_b32 v16, 4, v15")
            A("v_lshlrev_b32 v16, 14, v16")
            A("v_and_b32 v17, 15, v15")
            A(f"v_lshl_add_u32 v17, {v(vG)}, 4, v17")
            A(f"v_lshl_add_u32 {v(vSh+i)}, v17, 4, v16")
            A("v_cmp_gt_u32 vcc, 2048, v15")
            A("v_mov_b32 v17, 0x7f000000")
            A("s_nop 0")
            A(f"v_cndmask_b32 {v(vSh+i)}, v17, {v(vSh+i)}, vcc")
        G2, SB = 56, 72
        A(f"v_add_u32 v14, {3*2048}, {v(vCol)}")
        A(f"v_add_u32 v15, {4*2048}, {v(vCol)}")
        col_loads(Q, SB, 14, sMs, 4, "epi")
        col_loads(Q, G2, 15, sMs, 4, "epi")
        X = 96
        unpack(A, ACC, X2P, 8)
        A(f"v_mul_f32 v90, -{v(MU1)}, {v(R1)}")
        A(f"v_mov_b32 v92, {v(R1)}")
        Q.wait("epi")
        for i in range(0, 16, 2):
            A(f"v_pk_fma_f32 {v(ACC+i,2)}, {v(ACC+i,2)}, v[92:93], v[90:91] op_sel_hi:[1,0,0]")
            A(f"v_pk_fma_f32 {v(ACC+i,2)}, {v(ACC+i,2)}, {v(G2+i,2)}, {v(SB+i,2)}")
        M.stamp(M.vtmp)
        M.poll_end(then=lambda: G.issue_weights('late'))
        G.run(act_loader(M, G, lambda ks, rb: vSh + (ks >> 2), sAs), lambda rb, nb: ACC + 4*nb, init=True)
        M.stamp(M.vtmp)
        A.nop(6)
        for i in range(8): A(f"v_cvt_pk_bf16_f32 {v(X1P+i)}, {v(ACC+2*i)}, {v(ACC+2*i+1)}")
        A(f"s_lshl_b32 s51, {s(sRb)}, 14")
        A(f"s_lshl_b32 s53, {s(sCb)}, 11")
        A("s_add_u32 s51, s51, s53")
        for m in range(2):
            Q.issue(f"buffer_store_dwordx4 {v(X1P+4*m,4)}, {v(vFr)}, {s(sX1,4)}, s51 offen offset:{1024*m} {SC}", "st")
        unpack(A, X, X1P, 8)
        P = 120
        A(f"v_pk_add_f32 {v(P,2)}, {v(X,2)}, {v(X+2,2)}")
        A(f"v_pk_mul_f32 {v(P+2,2)}, {v(X,2)}, {v(X,2)}")
        for i in range(2, 16, 2):
            if i >= 4: A(f"v_pk_add_f32 {v(P,2)}, {v(P,2)}, {v(X+i,2)}")
            A(f"v_pk_fma_f32 {v(P+2,2)}, {v(X+i,2)}, {v(X+i,2)}, {v(P+2,2)}")
        A(f"v_add_f32 {v(P+4)}, {v(P)}, {v(P+1)}")
        A(f"v_add_f32 {v(P+5)}, {v(P+2)}, {v(P+3)}")
        allreduce_rows(A, [P+4, P+5], [P+6, P+7])
        A(f"s_lshl_b32 s51, {s(sRb)}, 10")
        A(f"s_lshl_b32 s53, {s(sCb)}, 3")
        A("s_add_u32 s51, s51, s53")
        A(f"v_lshlrev_b32 v14, 6, {v(vRow)}")
        A("s_mov_b64 exec, 0xffff")
        Q.issue(f"buffer_store_dwordx2 {v(P+4,2)}, v14, {s(sS2,4)}, s51 offen {SC}", "st")
        A("s_mov_b64 exec, -1")
        flag_off(A, 47, F_3, sRg)
        M.signal(47, 20, "st")
        next_pre()
        M.stamp(M.vtmp)

class T4:
    sRg2, sCb2, sRb2, sCol2 = 88, 89, 90, 91
    def __init__(self, M):
        self.M = M
        self.G = Gemm(M, NB=8, RB=2, nks=16, CK=4, RD=4, pitch=3584, PD=4, ahead=1)
    def pre(self):
        A = self.M.A
        A(f"s_and_b32 s33, s{sWG}, 7")
        A("s_lshl_b32 s33, s33, 1")
        A(f"s_lshr_b32 s34, s{sWG}, 3")
        A("s_and_b32 s34, s34, 1")
        A(f"s_add_u32 {s(self.sRg2)}, s33, s34")
        A(f"s_lshr_b32 {s(self.sCb2)}, s{sWG}, 4")
        A(f"s_lshl_b32 {s(self.sRb2)}, {s(self.sRg2)}, 3")
        A(f"s_lshl_b32 s33, s{sWV}, 1")
        A(f"s_add_u32 {s(self.sRb2)}, {s(self.sRb2)}, s33")
        A(f"s_lshl_b32 {s(self.sCol2)}, {s(self.sCb2)}, 8")
        w_srd(A, KA_W3, 512*3584)
        self.G.setup(self.sCol2, sWs, vWD=2, vTR=200, tmp=GT, sM0=48, sSo=49, sT=50)
        self.G.issue_weights('early')
    def body(self, next_pre):
        M = self.M; A, Q, G = M.A, M.Q, self.G
        A(f"s_lshl_b32 s51, {s(self.sRg2)}, 1")
        flag_off(A, 53, F_3, 51)
        A("s_add_u32 s54, s53, 128")
        M.poll_begin([(53, 8), (54, 8)])
        sAs, sS2, sCS, sU = 16, 20, 24, 28
        srd(A, sAs, sWS, 2048*1024, WS_X1)
        srd(A, sS2, sWS, 2048*64, WS_ST2)
        srd(A, sCS, sWS, 1792*4, WS_CS3)
        srd(A, sU, sWS, 2048*3584, WS_U)
        ACC = 64
        acc = lambda rb, nb: ACC + (rb*8 + nb)*4
        vAct, vSt, vC2 = 14, 16, 18
        A(f"s_lshl_b32 s51, {s(self.sRb2)}, 14")
        A(f"v_add_u32 {v(vAct)}, s51, {v(vFr)}")
        A(f"v_add_u32 {v(vAct+1)}, 16384, {v(vAct)}")
        A(f"s_lshl_b32 s51, {s(self.sRb2)}, 10")
        A(f"v_lshlrev_b32 {v(vSt)}, 6, {v(vRow)}")
        A(f"v_lshl_add_u32 {v(vSt)}, {v(vG)}, 4, {v(vSt)}")
        A(f"v_add_u32 {v(vSt)}, s51, {v(vSt)}")
        A(f"v_add_u32 {v(vSt+1)}, 1024, {v(vSt)}")
        A(f"s_lshl_b32 s51, {s(self.sCb2)}, 9")
        A(f"v_lshlrev_b32 {v(vC2)}, 4, {v(vG)}")
        A(f"v_add_u32 {v(vC2)}, s51, {v(vC2)}")
        STr, CS = 40, 128
        col_loads(Q, CS, vC2, sCS, 8, "cs")
        gelu_consts(A, 56, 22)
        def first():
            for rb in range(2):
                Q.issue(f"buffer_load_dwordx4 {v(STr+4*rb,4)}, {v(vSt+rb)}, {s(sS2,4)}, 0 offen {SC}", "epi")
        def overlap():
            Q.wait("epi", "cs")
            Sx = [48, 49, 50, 51]
            for rb in range(2):
                A(f"v_add_f32 {v(Sx[2*rb])}, {v(STr+4*rb)}, {v(STr+4*rb+2)}")
                A(f"v_add_f32 {v(Sx[2*rb+1])}, {v(STr+4*rb+1)}, {v(STr+4*rb+3)}")
            allreduce_rows(A, Sx, [52, 53, 54, 55])
            for rb in range(2):
                mu, r = 56 + 4*rb, 58 + 4*rb
                row_stats(A, Sx[2*rb], Sx[2*rb+1], mu, r, 24)
                A(f"v_sub_f32 {v(mu)}, 0, {v(mu)}")
            for rb in range(2):
                for i in range(0, 32, 2):
                    A(f"v_pk_mul_f32 {v(acc(rb,0)+i,2)}, {v(CS+i,2)}, {v(56+4*rb,2)} op_sel_hi:[1,0]")
        M.stamp(M.vtmp)
        M.poll_end(vt=28, then=lambda: G.issue_weights('late'))
        G.run(act_loader(M, G, lambda ks, rb: vAct + rb, sAs), acc, first=first, overlap=overlap, init=True)
        M.stamp(M.vtmp)
        A.nop(6)
        A(f"s_mul_i32 s51, {s(self.sRb2)}, {56*1024}")
        A(f"s_lshl_b32 s53, {s(self.sCb2)}, 12")
        A("s_add_u32 s51, s51, s53")
        for rb in range(2):
            mu, r = 56 + 4*rb, 58 + 4*rb
            for half in range(2):
                rr = [acc(rb, 0) + 16*half + i for i in range(16)]
                for i in range(0, 16, 2):
                    A(f"v_pk_mul_f32 {v(rr[i],2)}, {v(rr[i],2)}, {v(r,2)} op_sel_hi:[1,0]")
                gelu_pk(A, rr, [160+i for i in range(16)], 56, 22)
                PK = 180 + 8*((2*rb + half) & 1)
                for i in range(8): A(f"v_cvt_pk_bf16_f32 {v(PK+i)}, {v(rr[2*i])}, {v(rr[2*i+1])}")
                for m in range(2):
                    Q.issue(f"buffer_store_dwordx4 {v(PK+4*m,4)}, {v(vFr)}, {s(sU,4)}, s51 offen offset:{1024*(2*half+m)} {SC}", "st")
            if rb == 0: A(f"s_add_u32 s51, s51, {56*1024}")
        flag_off(A, 47, F_4, self.sRg2)
        M.signal(47, 20, "st")
        next_pre()
        M.stamp(M.vtmp)

class T5:
    def __init__(self, M):
        self.M = M
        self.G = GemmK(M, nks=14, pitch=1024)
    def pre(self):
        A = self.M.A
        w_srd(A, KA_W4, 1792*1024)
        self.G.setup(sCol, sWs, vWD=4, vTR=8, tmp=GT, sM0=48, sSo=49, sT=50)
        A(f"s_mul_i32 s62, s{sWV}, {14*32768}")
        self.early(True)
    def early(self, first):
        M = self.M; A = M.A
        l = M.lab("e5")
        q = list(M.Q.q)
        if first:
            A(f"s_cmp_eq_u32 s{sWV}, 0")
            A(f"s_cbranch_scc1 {l}")
        for k in range(7): self.G.w_dma(k, self.wso)
        if first: A.label(l)
        else: M.Q.q = q
    def wso(self, ks):
        self.M.A(f"s_add_u32 s49, s62, {ks * 32768}")
    def body(self):
        M = self.M; A, Q, G = M.A, M.Q, self.G
        A(f"s_lshr_b32 s51, {s(sRg)}, 1")
        flag_off(A, 53, F_4, 51)
        M.poll_begin([(53, 14)])
        kptr(A, 8, KA_OUT)
        sAs, sMs, sOut = 16, 20, 24
        srd(A, sAs, sWS, 2048*3584, WS_U)
        srd(A, sMs, sWS, 3072*4, WS_MOD)
        A("s_waitcnt lgkmcnt(0)")
        srd(A, sOut, 8, 2048*1024)
        ACC, vActs, vOut = 160, 12, 19
        for jj in range(4):
            A(f"s_xor_b32 s51, s{sWV}, {jj}")
            A(f"s_lshl_b32 s55, {s(sRg)}, 2")
            A("s_add_u32 s51, s51, s55")
            A(f"s_mul_i32 s51, s51, {56*1024}")
            A(f"v_add_u32 {v(vActs+jj)}, s51, {v(vFr)}")
        A(f"v_and_b32 v20, 1, {v(vG)}")
        A("v_lshlrev_b32 v20, 1, v20")
        A(f"v_lshrrev_b32 v21, 1, {v(vG)}")
        A("v_or_b32 v20, v20, v21")
        A("v_lshlrev_b32 v20, 4, v20")
        A(f"v_lshl_add_u32 v20, {v(vRow)}, 10, v20")
        A(f"s_lshl_b32 s51, {s(sRb)}, 14")
        A(f"s_add_u32 s51, s51, {s(sCol)}")
        A(f"v_add_u32 {v(vOut)}, s51, v20")
        GB = 56
        A(f"v_add_u32 v20, {5*2048}, {v(vCol)}")
        col_loads(Q, GB, 20, sMs, 4, "epi")
        X2 = 72
        unpack(A, ACC, X1P, 8)
        unpack(A, X2, X2P, 8)
        M.stamp(M.vtmp)
        M.poll_end(then=lambda: self.early(False))
        A(f"s_mul_i32 s63, s{sWV}, {14*1024}")
        def act_load(ks, jj):
            if jj == 0: A(f"s_add_u32 s52, s63, {ks * 1024}")
            Q.issue(f"buffer_load_dwordx4 {a(G.AF(ks, jj),4)}, {v(vActs+jj)}, {s(sAs,4)}, s52 offen {SC}", f"k{ks}")
        acc = lambda jj, nb: ACC + (jj*4 + nb)*4
        G.run(self.wso, act_load, acc, init0=True, w_early=True)
        M.stamp(M.vtmp)
        G.reduce(acc, 24)
        Q.wait("epi")
        A.nop(6)
        for i in range(0, 16, 2):
            A(f"v_pk_fma_f32 {v(X2+i,2)}, {v(GB+i,2)}, {v(ACC+i,2)}, {v(X2+i,2)}")
        PK = 104
        for i in range(8): A(f"v_cvt_pk_bf16_f32 {v(PK+i)}, {v(X2+2*i)}, {v(X2+2*i+1)}")
        A.nop(2)
        for m in range(2):
            A(f"v_permlane16_swap_b32 {v(PK+4*m)}, {v(PK+4*m+2)}")
            A(f"v_permlane16_swap_b32 {v(PK+4*m+1)}, {v(PK+4*m+3)}")
        for m in range(2):
            Q.issue(f"buffer_store_dwordx4 {v(PK+4*m,4)}, {v(vOut)}, {s(sOut,4)}, 0 offen offset:{64*m}", "st")
        if M.stamps:
            A("s_waitcnt vmcnt(0)")
            M.stamp(M.vtmp)

def gen_mega(name="mega_kernel", stamps=False, prefetch=True, fine=False):
    M = Mega(name, stamps)
    M.fine = fine
    A = M.A
    A(f"s_cmp_ge_u32 s{sWG}, 256")
    A(f"s_cbranch_scc1 {name}_end")
    A(f"s_load_dwordx2 s[{sWS}:{sWS+1}], s[0:1], {KA_WS}")
    A("v_lshrrev_b32 v2, 6, v0")
    A("v_and_b32 v1, 63, v0")
    A("s_nop 0")
    A(f"v_readfirstlane_b32 s{sWV}, v2")
    A("s_waitcnt lgkmcnt(0)")
    srd(A, sFL, sWS, NFLAG*128, WS_FLAG)
    M.vtmp = 122
    M.stamp_setup(0, 122)
    t1, t2, t3, t4, t5 = T1(M), T2(M), T3(M), T4(M), T5(M)
    stage_attn(M, t1.pre, prefetch=prefetch)
    t1.body(t2.pre)
    t2.body(t3.pre)
    def after_t3():
        A(f"s_cmp_ge_u32 s{sWG}, 224")
        A(f"s_cbranch_scc1 {name}_no4a")
        t4.pre()
        A.label(f"{name}_no4a")
    t3.body(after_t3)
    A(f"s_cmp_ge_u32 s{sWG}, 224")
    A(f"s_cbranch_scc1 {name}_no4b")
    t4.body(t5.pre)
    if stamps: A("s_waitcnt vmcnt(0)")
    q_join = list(M.Q.q)
    A(f"s_branch {name}_t5")
    A.label(f"{name}_no4b")
    M.Q.q = []
    t5.pre()
    if stamps: A("s_waitcnt vmcnt(0)")
    else: assert M.Q.q == q_join, (M.Q.q, q_join)
    A.label(f"{name}_t5")
    if stamps: M.Q.q = []
    t5.body()
    A.label(f"{name}_end")
    A("s_endpgm")
    agprs = 256
    return dict(name=name, asm=A, grid=256, block=256, lds=MEGA_LDS, nv=512, acc=256, ns=102, nstamp=M.nstamp, region=1, stamp_slots=32, stamp_names=M.names)
```
